```python
import torch

def _softmax(x, axis=-1):
    return torch.softmax(x, dim=axis)
def _gelu(x):
    return torch.nn.functional.gelu(x, approximate="tanh")
def _silu(x):
    return torch.nn.functional.silu(x)
def _sigmoid(x):
    return torch.sigmoid(x)
def _layernorm(x, axis=-1, eps=1e-5):
    m = x.mean(dim=axis, keepdim=True)
    v = x.var(dim=axis, keepdim=True, unbiased=False)
    return (x - m) / torch.sqrt(v + eps)
def _scatter_add(tgt, idx, src, axis=0):
    return tgt.clone().index_add_(axis, idx, src)
def _segment_sum(src, seg, n):
    out = torch.zeros((n,) + src.shape[1:], dtype=src.dtype)
    return out.index_add_(0, seg, src)
def _pad(x, pw):
    flat = tuple(v for pair in reversed(pw) for v in pair)
    return torch.nn.functional.pad(x, flat)

kernel_name = 'concat_heads__grouped_kv_mqa__linear_kernel_hedgehog__prompt'

def setup_inputs():

    _w = (lambda a: (lambda t: t.to(torch.bfloat16) if t.is_floating_point() else t)(torch.as_tensor(a)))
    def _A_setup():
        B, S, D, H = 1, 2048, 640, 32
        Dh = D // H
        return {
            "x": _w((lambda *s: torch.randn(*s, dtype=torch.bfloat16) * 0.05)(B, S, D)),
            "wq": _w((lambda *s: torch.randn(*s, dtype=torch.bfloat16) * 1.6)(D, H * Dh)),
            "wk": _w((lambda *s: torch.randn(*s, dtype=torch.bfloat16) * 1.6)(D, Dh)),
            "wv": _w((lambda *s: torch.randn(*s, dtype=torch.bfloat16) * 0.1)(D, Dh)),
            "wo": _w((lambda *s: torch.randn(*s, dtype=torch.bfloat16) * 0.1)(H * Dh, D)),
        }
    _A_in = _A_setup()

    def _B_setup():
        B, S, D, H = 1, 2048, 640, 32
        Dh = D // H
        return {
            "x": _w((lambda *s: torch.randn(*s, dtype=torch.bfloat16) * 0.4)(B, S, D)),
            "wqkv": _w((lambda *s: torch.randn(*s, dtype=torch.bfloat16) * 0.4)(D, 3 * D)),
            "w_phi": _w((lambda *s: torch.randn(*s, dtype=torch.bfloat16) * 0.4)(H, Dh, Dh) * (Dh ** -0.5)),
            "wo": _w((lambda *s: torch.randn(*s, dtype=torch.bfloat16) * 0.05)(D, D)),
        }
    _B_in = _B_setup()

    return {
        "A_x": _A_in["x"],
        "A_wq": _A_in["wq"],
        "A_wk": _A_in["wk"],
        "A_wv": _A_in["wv"],
        "A_wo": _A_in["wo"],
        "B_x": _B_in["x"],
        "B_wqkv": _B_in["wqkv"],
        "B_w_phi": _B_in["w_phi"],
        "B_wo": _B_in["wo"],
    }

def reference(A_x, A_wq, A_wk, A_wv, A_wo, B_x, B_wqkv, B_w_phi, B_wo):
    def _A_ref(x, wq, wk, wv, wo):
        B, S, D = x.shape
        H = 32
        Dh = D // H
        q = (lambda x, *d: x.permute(*d))((x @ wq).reshape(B, S, H, Dh), 0, 2, 1, 3)
        k = x @ wk
        v = x @ wv
        scores = torch.einsum("bhqd,bkd->bhqk", q, k) * (Dh ** -0.5)
        p = _softmax(scores, axis=-1)
        o = torch.einsum("bhqk,bkd->bhqd", p, v)
        return (lambda x, *d: x.permute(*d))(o, 0, 2, 1, 3).reshape(B, S, H * Dh) @ wo

    def _B_ref(x, wqkv, w_phi, wo):
        B, S, D = x.shape
        H = 32; Dh = D // H
        qkv = (lambda x, *d: x.permute(*d))((x @ wqkv).reshape(B, S, 3, H, Dh), 2, 0, 3, 1, 4)
        q, k, v = qkv[0], qkv[1], qkv[2]
        pq = torch.einsum("bhsd,hdf->bhsf", q, w_phi)
        pk = torch.einsum("bhsd,hdf->bhsf", k, w_phi)
        phi_q = torch.concatenate([_softmax(pq, axis=-1), _softmax(-pq, axis=-1)], axis=-1)
        phi_k = torch.concatenate([_softmax(pk, axis=-1), _softmax(-pk, axis=-1)], axis=-1)
        kv = torch.einsum("bhsf,bhsd->bhfd", phi_k, v)
        z  = torch.einsum("bhsf->bhf", phi_k)
        num = torch.einsum("bhqf,bhfd->bhqd", phi_q, kv)
        den = torch.einsum("bhqf,bhf->bhq", phi_q, z)[..., None] + 1e-6
        o = num / den
        return (lambda x, *d: x.permute(*d))(o, 0, 2, 1, 3).reshape(B, S, D) @ wo

    a = _A_ref(A_x, A_wq, A_wk, A_wv, A_wo)
    b = _B_ref(B_x, B_wqkv, B_w_phi, B_wo)
    return torch.concatenate([a, b], axis=-1)
```

```python
import re

class Asm:
    def __init__(self):
        self.lines = []
    def __call__(self, s=""):
        for l in s.split("\n"):
            self.lines.append(l)
    def emit(self, s):
        self.lines.append("    " + s)
    def label(self, s):
        self.lines.append(s + ":")
    def comment(self, s):
        self.lines.append("    ; " + s)
    def text(self):
        return "\n".join(self.lines) + "\n"

def vr(base, n=1):
    return f"v{base}" if n == 1 else f"v[{base}:{base+n-1}]"
def sr(base, n=1):
    return f"s{base}" if n == 1 else f"s[{base}:{base+n-1}]"

_reg_re = re.compile(r"\b([vsa])(\d+)\b|\b([vsa])\[(\d+):(\d+)\]")
def regs_of(op):
    out = []
    for m in _reg_re.finditer(op):
        if m.group(1):
            out.append((m.group(1), int(m.group(2))))
        else:
            for i in range(int(m.group(4)), int(m.group(5)) + 1):
                out.append((m.group(3), i))
    if "vcc" in op: out.append(("s", "vcc"))
    if re.search(r"\bexec\b", op): out.append(("s", "exec"))
    if re.search(r"\bm0\b", op): out.append(("s", "m0"))
    return out

TRANS = ("v_exp_f32", "v_log_f32", "v_rcp_f32", "v_rsq_f32", "v_sqrt_f32", "v_sin_f32", "v_cos_f32", "v_exp_f16", "v_rcp_iflag_f32")

def parse(line):
    l = line.split(";")[0].strip()
    if not l or l.endswith(":") or l.startswith("."):
        return None
    parts = l.split(None, 1)
    op = parts[0]
    args = [a.strip() for a in parts[1].split(",")] if len(parts) > 1 else []
    return op, args, l

def classify(op, args):
    d = dict(op=op, kind="other", dst=[], src=[], states=1)
    base = op.replace("_e32", "").replace("_e64", "").replace("_dpp", "").replace("_sdwa", "")
    if op == "s_nop":
        d["states"] = int(args[0], 0) + 1
        d["kind"] = "nop"
        return d
    if op.startswith("v_mfma"):
        d["kind"] = "mfma"
        d["dst"] = regs_of(args[0]); d["A"] = regs_of(args[1]); d["B"] = regs_of(args[2]); d["C"] = regs_of(args[3])
        d["src"] = d["A"] + d["B"] + d["C"]
        d["passes"] = 8 if "32x32" in op else 4
        return d
    if op.startswith("v_"):
        d["kind"] = "valu"
        if base.startswith("v_cmp"):
            d["dst"] = regs_of(args[0]); d["src"] = sum((regs_of(a) for a in args[1:]), [])
            if base.startswith("v_cmpx"): d["dst"].append(("s", "exec"))
        elif base.startswith("v_permlane32_swap") or base.startswith("v_permlane16_swap"):
            d["dst"] = regs_of(args[0]) + regs_of(args[1]); d["src"] = list(d["dst"]); d["kind"] = "permlane"
        elif base in ("v_readfirstlane_b32", "v_readlane_b32"):
            d["dst"] = regs_of(args[0]); d["src"] = sum((regs_of(a) for a in args[1:]), []); d["kind"] = "readlane"
        else:
            d["dst"] = regs_of(args[0])
            rest = args[1:]
            if base in ("v_add_co_u32", "v_sub_co_u32", "v_addc_co_u32", "v_subb_co_u32", "v_div_scale_f32"):
                d["dst"] += regs_of(args[1]); rest = args[2:]
            d["src"] = sum((regs_of(a) for a in rest), [])
            if base in ("v_fmac_f32", "v_pk_fmac_f16", "v_writelane_b32") or "row_" in " ".join(args) or "UNUSED_PRESERVE" in " ".join(args):
                d["src"] += regs_of(args[0])
            if base == "v_cndmask_b32" and len(args) == 3: d["src"].append(("s", "vcc"))
            if "dpp" in op or "row_" in " ".join(args) or "quad_perm" in " ".join(args): d["dpp"] = True
        if base in TRANS: d["trans"] = True
        return d
    if op.startswith("ds_") or op.startswith("global_") or op.startswith("buffer_") or op.startswith("flat_"):
        d["kind"] = "mem"
        allr = [regs_of(a.split(" ")[0]) for a in args]
        isload = ("load" in op or "read" in op or "bpermute" in op or "swizzle" in op or "permute" in op) and "lds" not in op.split("_")[2:3] and not (op.startswith("buffer_load") and args and args[-1].endswith("lds"))
        if op.startswith("global_load_lds"): isload = False
        if "atomic" in op and "sc0" in " ".join(args): isload = True
        if isload:
            d["dst"] = allr[0]; d["src"] = sum(allr[1:], [])
        else:
            d["src"] = sum(allr, [])
        d["isstore"] = ("store" in op or "write" in op)
        d["wide"] = ("x4" in op or "x3" in op or "b128" in op or "b96" in op)
        d["lds_dma"] = op.startswith("global_load_lds") or (op.startswith("buffer_load") and " ".join(args).rstrip().endswith("lds"))
        return d
    if op.startswith("s_"):
        d["kind"] = "salu"
        if op.startswith("s_cmp") or op.startswith("s_cbranch") or op.startswith("s_branch") or op in ("s_waitcnt", "s_barrier", "s_endpgm", "s_setprio", "s_sleep"):
            d["src"] = sum((regs_of(a) for a in args), [])
        else:
            d["dst"] = regs_of(args[0]) if args else []
            d["src"] = sum((regs_of(a) for a in args[1:]), [])
            if "saveexec" in op: d["dst"].append(("s", "exec"))
        return d
    return d

def check_hazards(text, verbose=True):
    ins = []
    for n, line in enumerate(text.split("\n"), 1):
        p = parse(line)
        if p is None: continue
        c = classify(p[0], p[1]); c["line"] = n; c["text"] = p[2]
        ins.append(c)
    probs = []
    def need(i, j, n, why):
        st = sum(ins[k]["states"] for k in range(i + 1, j))
        if st < n:
            probs.append(f"line {ins[j]['line']}: '{ins[j]['text']}' needs {n} wait states after line {ins[i]['line']} '{ins[i]['text']}' (has {st}): {why}")
    W = 24
    for j, c in enumerate(ins):
        sset = set(c["src"]); dset = set(c["dst"])
        for i in range(j - 1, max(-1, j - W), -1):
            p = ins[i]
            if p["op"] in ("s_endpgm",): break
            pd = set(p["dst"])
            pv = {r for r in pd if r[0] in "va"}; ps = {r for r in pd if r[0] == "s"}
            if p["kind"] in ("valu", "permlane", "readlane"):
                if c["kind"] == "mfma" and pv & sset: need(i, j, 2, "VALU write -> MFMA read")
                if c["kind"] == "mfma" and ("s", "exec") in pd: need(i, j, 4, "VALU exec write -> MFMA")
                if c["kind"] == "permlane" and pv & sset: need(i, j, 2, "VALU write -> permlane")
                if c["kind"] == "readlane" and pv & sset: need(i, j, 1, "VALU write -> readlane")
                if c.get("dpp") and pv & sset: need(i, j, 2, "VALU write -> DPP read")
                if c.get("dpp") and ("s", "exec") in pd: need(i, j, 5, "VALU exec write -> DPP")
                if p.get("trans") and c["kind"] in ("valu", "permlane", "readlane", "mfma") and not c.get("trans") and pv & sset: need(i, j, 1, "trans -> VALU")
                if ps & sset:
                    if c["kind"] == "mem": need(i, j, 5, "VALU sgpr write -> VMEM read")
                    elif c["kind"] == "valu": need(i, j, 2, "VALU sgpr write -> VALU read")
                    elif c["kind"] == "readlane": need(i, j, 4, "VALU sgpr write -> lane select")
                    elif c["kind"] == "permlane" and ("s", "exec") in pd: need(i, j, 4, "cmpx->permlane")
                if ("s", "exec") in pd and c["kind"] in ("readlane",): need(i, j, 4, "exec write -> readlane")
            if p["kind"] == "mfma":
                np_ = p["passes"]
                raw = {2: 5, 4: 8, 8: 12, 16: 20}[np_]
                if c["kind"] == "mfma":
                    if pd & (set(c["A"]) | set(c["B"])): need(i, j, raw, "MFMA D -> MFMA A/B")
                    if pd & set(c["C"]) and not (pd == set(c["C"]) and c["passes"] == np_): need(i, j, {4: 6, 8: 10}[np_], "MFMA D -> MFMA C overlap")
                    if pd & set(c["dst"]) and not (pd == set(c["C"])) and not (pd & set(c["C"])):
                        need(i, j, {4: 6, 8: 10}[np_], "MFMA D -> MFMA D WAW (conservative)")
                elif c["kind"] in ("valu", "permlane", "readlane", "mem"):
                    if pd & (sset | dset): need(i, j, raw, "MFMA D -> VALU/mem read/write")
                if c["kind"] in ("valu", "permlane") and set(p["C"]) & dset: need(i, j, {4: 3, 8: 7}[np_], "MFMA reads C -> VALU write WAR")
            if p["kind"] == "mem" and p.get("isstore") and p.get("wide") and p["op"].startswith(("global", "buffer", "flat")):
                if c["kind"] in ("valu", "permlane", "mfma") and set(p["src"]) & dset: need(i, j, 2, "wide store data WAR")
            if p["kind"] == "salu" and ("s", "m0") in pd and c["kind"] == "mem" and c.get("lds_dma"): need(i, j, 1, "m0 write -> LDS DMA")
    if verbose:
        for x in probs: print("HAZARD:", x)
    return probs


def stamp(a, idx, prof):
    if not prof: return
    a.emit(f"s_memtime s[{64+4*idx}:{65+4*idx}]")
    a.emit(f"s_memrealtime s[{66+4*idx}:{67+4*idx}]")

def stamp_store(a, prof, s_ws, s_w, vt0, vt1, nst=8, ws_prof=0, nwaves_log=3):
    if not prof: return
    a.emit("s_waitcnt lgkmcnt(0)")
    a.emit(f"s_lshl_b32 s60, s2, {nwaves_log}")
    a.emit(f"s_add_u32 s60, s60, s{s_w}")
    a.emit("s_lshl_b32 s60, s60, 7")
    a.emit(f"s_add_u32 s60, s60, {ws_prof}")
    a.emit(f"s_add_u32 s62, s{s_ws}, s60")
    a.emit(f"s_addc_u32 s63, s{s_ws+1}, 0")
    a.emit(f"s_mov_b64 exec, -1")
    a.emit(f"v_mov_b32 v{vt0}, 0")
    for i in range(nst * 4):
        a.emit(f"v_mov_b32 v{vt1}, s{64+i}")
        a.emit(f"global_store_dword v{vt0}, v{vt1}, s[62:63] offset:{4*i}")
```

```python
from asm import *
from layout import *

O_ = 0
Q1_ = 64
Q2_ = 80
SH_ = 88
S_ = 96
P_ = 128
KV_ = 144
M_ = 208
V_L16 = M_
V_LANE = M_ + 1
V_T0 = M_ + 2
V_T1 = M_ + 3
V_T2 = M_ + 4
V_T3 = M_ + 5
V_KM = M_ + 6
V_AD = M_ + 7
V_WR = M_ + 10
V_RD = M_ + 11
V_AB = M_ + 12
V_Z = M_ + 16
NV = 232
S_WS = 4; S_KV = 6; S_Q = 8
S_W = 10; S_QB = 11; S_KQ = 12; S_CNT = 13; S_T = 14; S_T2 = 15
S_MLO = 16; S_MHI = 18
S_RB = 20; S_HG = 21; S_C60 = 22; S_YIELD = 23
S_OA = 24; S_HEAD = 26; S_PASS = 27
S_KV0 = 28; S_LO = 30
S_PB = 32
S_PIECE = 34; S_M0P = 35
S_OB = 36
S_PQ = 38
S_DM = 40
S_T3 = 42; S_T4 = 43
S_HB = 44
KVL = 72 * 1024
AFL = 0
AFL = KVL + 80 * 1024
LDS_BYTES = AFL + 2560

def mfma(a, d, A, B, C):
    c = "0" if C is None else vr(C, 16)
    a.emit(f"v_mfma_f32_32x32x16_bf16 {vr(d,16)}, {vr(A,4)}, {vr(B,4)}, {c}")
def mfma8(a, d, A, B, C):
    c = "0" if C is None else vr(C, 16)
    a.emit(f"v_mfma_f32_32x32x8_bf16 {vr(d,16)}, {vr(A,2)}, {vr(B,2)}, {c}")

def kvload(a, b):
    base = KV_ + 16 * b
    for f in range(4):
        a.emit(f"global_load_dwordx4 {vr(base+4*f,4)}, {vr(V_L16)}, {sr(S_KV,2)} offset:{1024*f}")
def kvadv(a):
    a.emit(f"s_add_u32 {sr(S_KV)}, {sr(S_KV)}, 4096")
    a.emit(f"s_addc_u32 {sr(S_KV+1)}, {sr(S_KV+1)}, 0")

def qk(a, Sd, Kb, j):
    return [lambda: mfma(a, Sd, Kb, Q1_ + 4 * j, None),
            lambda: mfma8(a, Sd, Kb + 4 + 2 * (j & 1), Q2_ + 2 * j, Sd)]

def slot(a, n, name, yield_at, withB):
    j = n & 3
    nn = n + 1; tn = (nn >> 2) & 3; jn = nn & 3
    pp = n - 1; tp = (pp >> 2) & 3; jp = pp & 3
    Sc = S_ + 16 * (n & 1); Sn = S_ + 16 * (nn & 1)
    Pc = P_ + 8 * (n & 1); Pp = P_ + 8 * (pp & 1)
    Kn = KV_ + 16 * tn; Vp = KV_ + 16 * tp + 8
    ms = qk(a, Sn, Kn, jn) + [
          lambda: mfma(a, O_ + 16 * jp, Vp, Pp, O_ + 16 * jp),
          lambda: mfma(a, O_ + 16 * jp, Vp + 4, Pp + 4, O_ + 16 * jp)]
    for g in range(4):
        ms[g]()
        for i in range(4):
            a.emit(f"v_exp_f32 {vr(Sc+4*g+i)}, {vr(Sc+4*g+i)}")
        a.emit(f"v_cvt_pk_bf16_f32 {vr(Pc+2*g)}, {vr(Sc+4*g)}, {vr(Sc+4*g+1)}")
        a.emit(f"v_cvt_pk_bf16_f32 {vr(Pc+2*g+1)}, {vr(Sc+4*g+2)}, {vr(Sc+4*g+3)}")
    if j == 2:
        t = n >> 2
        a.emit("s_waitcnt vmcnt(4)")
        kvadv(a)
        if withB:
            a.emit(f"s_cmp_lt_u32 {sr(S_PIECE)}, 10")
            a.emit(f"s_cbranch_scc0 {name}_nodma{n}")
            a.emit(f"s_mov_b32 m0, {sr(S_M0P)}")
            a.emit(f"s_add_u32 {sr(S_M0P)}, {sr(S_M0P)}, 1024")
            a.emit(f"global_load_lds_dwordx4 {vr(V_L16)}, {sr(S_PB,2)}")
            a.emit(f"s_cmp_eq_u32 {sr(S_PIECE)}, 4")
            a.emit(f"s_cselect_b32 {sr(S_T)}, {32*5120 - 4096}, {sr(S_T4)}")
            a.emit(f"s_add_u32 {sr(S_PB)}, {sr(S_PB)}, {sr(S_T)}")
            a.emit(f"s_addc_u32 {sr(S_PB+1)}, {sr(S_PB+1)}, 0")
            a.emit(f"s_add_u32 {sr(S_PIECE)}, {sr(S_PIECE)}, 1")
            a.label(f"{name}_nodma{n}")
        if n == yield_at:
            a.emit(f"s_cmp_eq_u32 {sr(S_CNT)}, {sr(S_YIELD)}")
            a.emit(f"s_cbranch_scc0 {name}_noyield")
            a.emit("s_setprio 0")
            a.label(f"{name}_noyield")
        if n == 14:
            a.emit(f"s_sub_u32 {sr(S_CNT)}, {sr(S_CNT)}, 1")
            a.emit(f"s_cmp_lg_u32 {sr(S_CNT)}, 0")
        kvload(a, (t + 3) & 3)

def build_q2(a, T0regs, T1regs):
    for j in range(4):
        p = j >> 1
        m = S_MLO if (j & 1) == 0 else S_MHI
        a.emit(f"v_cndmask_b32 {vr(Q2_+2*j)}, {T0regs[j]}, {vr(SH_+4*p)}, {sr(m,2)}")
        a.emit(f"v_cndmask_b32 {vr(Q2_+2*j+1)}, {T1regs[j]}, {vr(SH_+4*p+1)}, {sr(m,2)}")

def out_addrs(a, dst, s_head):
    def sa(dsts, g):
        a.emit(f"s_lshr_b32 {sr(dsts)}, {sr(S_T3)}, 2")
        a.emit(f"s_lshl_b32 {sr(dsts)}, {sr(dsts)}, 10")
        a.emit(f"s_bfe_u32 {sr(S_T4)}, {sr(S_T3)}, 0x10001")
        a.emit(f"s_lshl_b32 {sr(S_T4)}, {sr(S_T4)}, 9")
        a.emit(f"s_add_u32 {sr(dsts)}, {sr(dsts)}, {sr(S_T4)}")
        a.emit(f"s_and_b32 {sr(S_T4)}, {sr(S_T3)}, 1")
        a.emit(f"s_lshl_b32 {sr(S_T4)}, {sr(S_T4)}, 3")
        a.emit(f"s_add_u32 {sr(dsts)}, {sr(dsts)}, {sr(S_T4)}")
    a.emit(f"s_mul_i32 {sr(S_T3)}, {sr(s_head)}, 5")
    for k in range(3):
        sa(S_T, None)
        a.emit(f"s_add_u32 {sr(S_T3)}, {sr(S_T3)}, 1")
        sa(S_T2, None)
        a.emit(f"s_add_u32 {sr(S_T3)}, {sr(S_T3)}, 1")
        a.emit(f"s_sub_u32 {sr(S_T2)}, {sr(S_T2)}, {sr(S_T)}")
        a.emit(f"v_add_u32 {vr(dst+k)}, {sr(S_T)}, {vr(V_T1)}")
        if k < 2: a.emit(f"v_mad_u32_u24 {vr(dst+k)}, {vr(V_T0)}, {sr(S_T2)}, {vr(dst+k)}")

def finalize(a, R, addr, s_out, eps=None, tag=""):
    a.emit(f"v_mov_b32 {vr(V_T2)}, {vr(R+8)}")
    a.emit(f"v_mov_b32 {vr(V_T3)}, {vr(R+8)}")
    a.emit("s_nop 1")
    a.emit(f"v_permlane32_swap_b32 {vr(V_T2)}, {vr(V_T3)}")
    a.emit("s_nop 1")
    if eps is not None:
        a.emit(f"v_add_f32 {vr(V_T3)}, {eps}, {vr(V_T3)}")
    a.emit(f"v_rcp_f32 {vr(V_T2)}, {vr(V_T3)}")
    a.emit("s_nop 0")
    for i in range(6):
        a.emit(f"v_pk_mul_f32 {vr(R+2*i,2)}, {vr(R+2*i,2)}, {vr(V_T2,2)} op_sel_hi:[1,0]")
    for i in range(6):
        a.emit(f"v_cvt_pk_bf16_f32 {vr(R+12+i)}, {vr(R+2*i)}, {vr(R+2*i+1)}")
    a.emit(f"global_store_dwordx2 {vr(addr)}, {vr(R+12,2)}, {sr(s_out,2)}")
    a.emit(f"global_store_dwordx2 {vr(addr+1)}, {vr(R+14,2)}, {sr(s_out,2)}")
    a.emit(f"s_mov_b64 exec, {sr(S_MLO,2)}")
    a.emit(f"global_store_dwordx2 {vr(addr+2)}, {vr(R+16,2)}, {sr(s_out,2)}")
    a.emit("s_mov_b64 exec, -1")

def gen_attn(name="attn_kernel", prof=False, yield_at=10, prio=True, withB=True):
    a = Asm()
    a(f".p2align 8\n.globl {name}\n.type {name},@function")
    a.label(name)
    a.emit("s_cmp_ge_u32 s2, 256")
    a.emit(f"s_cbranch_scc1 {name}_end")
    stamp(a, 0, prof)
    a.emit(f"s_load_dwordx2 {sr(S_WS,2)}, s[0:1], 88")
    if prio: a.emit("s_setprio 3")
    a.emit(f"v_lshrrev_b32 {vr(V_T0)}, 6, v0")
    a.emit(f"v_and_b32 {vr(V_LANE)}, 63, v0")
    a.emit(f"v_readfirstlane_b32 {sr(S_W)}, {vr(V_T0)}")
    a.emit(f"v_lshlrev_b32 {vr(V_L16)}, 4, {vr(V_LANE)}")
    a.emit(f"s_and_b32 {sr(S_QB)}, {sr(S_W)}, 1")
    a.emit(f"s_lshr_b32 {sr(S_KQ)}, {sr(S_W)}, 1")
    a.emit(f"s_lshr_b32 {sr(S_RB)}, s2, 2")
    a.emit(f"s_and_b32 {sr(S_HG)}, s2, 3")
    a.emit(f"s_lshl_b32 {sr(S_HEAD)}, {sr(S_HG)}, 3")
    a.emit(f"s_lshl_b32 {sr(S_T)}, {sr(S_QB)}, 2")
    a.emit(f"s_add_u32 {sr(S_HEAD)}, {sr(S_HEAD)}, {sr(S_T)}")
    a.emit(f"s_lshl_b32 {sr(S_T)}, {sr(S_RB)}, 4")
    a.emit(f"s_lshr_b32 {sr(S_T2)}, {sr(S_HEAD)}, 1")
    a.emit(f"s_add_u32 {sr(S_T)}, {sr(S_T)}, {sr(S_T2)}")
    a.emit(f"s_mul_i32 {sr(S_T)}, {sr(S_T)}, 3072")
    a.emit(f"s_lshl_b32 {sr(S_T2)}, {sr(S_KQ)}, 16")
    a.emit(f"s_add_u32 {sr(S_T2)}, {sr(S_T2)}, {WS_KV}")
    a.emit(f"v_lshlrev_b32 {vr(V_T1)}, 2, {vr(V_LANE)}")
    a.emit(f"v_add_u32 {vr(V_T2)}, 3072, {vr(V_L16)}")
    a.emit("s_waitcnt lgkmcnt(0)")
    a.emit(f"s_add_u32 {sr(S_Q)}, {sr(S_WS)}, {sr(S_T)}")
    a.emit(f"s_addc_u32 {sr(S_Q+1)}, {sr(S_WS+1)}, 0")
    a.emit(f"s_add_u32 {sr(S_KV)}, {sr(S_WS)}, {sr(S_T2)}")
    a.emit(f"s_addc_u32 {sr(S_KV+1)}, {sr(S_WS+1)}, 0")
    a.emit(f"s_add_u32 {sr(S_OA)}, {sr(S_WS)}, {WS_KMAX}")
    a.emit(f"s_addc_u32 {sr(S_OA+1)}, {sr(S_WS+1)}, 0")
    a.emit(f"global_load_dword {vr(V_KM)}, {vr(V_T1)}, {sr(S_OA,2)}")
    for p in range(2):
        av = V_L16 if p == 0 else V_T2
        a.emit(f"global_load_dwordx4 {vr(SH_+4*p,4)}, {vr(av)}, {sr(S_Q,2)} offset:2048")
        a.emit(f"global_load_dwordx4 {vr(Q1_+8*p,4)}, {vr(av)}, {sr(S_Q,2)}")
        a.emit(f"global_load_dwordx4 {vr(Q1_+8*p+4,4)}, {vr(av)}, {sr(S_Q,2)} offset:1024")
    kvload(a, 0); kvadv(a); kvload(a, 1); kvadv(a); kvload(a, 2)
    a.emit(f"s_mov_b32 {sr(S_MLO)}, -1")
    a.emit(f"s_mov_b32 {sr(S_MLO+1)}, 0")
    a.emit(f"s_mov_b32 {sr(S_MHI)}, 0")
    a.emit(f"s_mov_b32 {sr(S_MHI+1)}, -1")
    a.emit(f"s_mov_b32 {sr(S_C60)}, 0x42700000")
    a.emit(f"s_cmp_lt_u32 {sr(S_W)}, 4")
    a.emit(f"s_cselect_b32 {sr(S_YIELD)}, 1, 99")
    for i in range(4): a.emit(f"v_mov_b32 {vr(V_Z+i)}, 0")
    for i in range(8): a.emit(f"v_mov_b32 {vr(P_+8+i)}, 0")
    for j in range(4): mfma(a, O_ + 16 * j, V_Z, V_Z, None)
    for i in range(8): a.emit(f"v_mov_b32 {vr(KV_+48+8+i)}, 0")
    a.emit(f"s_mul_i32 {sr(S_T)}, {sr(S_QB)}, {12*3072}")
    a.emit(f"v_add_u32 {vr(V_WR)}, {sr(S_T)}, {vr(V_L16)}")
    a.emit(f"s_mul_i32 {sr(S_T2)}, {sr(S_KQ)}, {3*3072}")
    a.emit(f"s_add_u32 {sr(S_T)}, {sr(S_T)}, {sr(S_T2)}")
    a.emit(f"v_add_u32 {vr(V_RD)}, {sr(S_T)}, {vr(V_L16)}")
    a.emit(f"v_lshrrev_b32 {vr(V_T0)}, 5, {vr(V_LANE)}")
    a.emit(f"v_and_b32 {vr(V_T1)}, 31, {vr(V_LANE)}")
    a.emit(f"v_lshlrev_b32 {vr(V_T1)}, 4, {vr(V_T1)}")
    a.emit(f"s_add_u32 {sr(S_HB)}, {sr(S_HEAD)}, {sr(S_KQ)}")
    out_addrs(a, V_AD, S_HB)
    if withB:
        a.emit(f"s_and_b32 {sr(S_HB)}, s2, 31")
        out_addrs(a, V_AB, S_HB)
        a.emit(f"s_lshl_b32 {sr(S_T)}, {sr(S_W)}, 6")
        a.emit(f"s_add_u32 {sr(S_T)}, {sr(S_T)}, {sr(S_HB)}")
        a.emit(f"s_mul_i32 {sr(S_T)}, {sr(S_T)}, 5120")
        a.emit(f"s_add_u32 {sr(S_T)}, {sr(S_T)}, {WS_KVP}")
        a.emit(f"s_add_u32 {sr(S_PB)}, {sr(S_WS)}, {sr(S_T)}")
        a.emit(f"s_addc_u32 {sr(S_PB+1)}, {sr(S_WS+1)}, 0")
        a.emit(f"s_mul_i32 {sr(S_M0P)}, {sr(S_W)}, 10240")
        a.emit(f"s_add_u32 {sr(S_M0P)}, {sr(S_M0P)}, {KVL}")
        a.emit(f"s_mov_b32 {sr(S_PIECE)}, 0")
        a.emit(f"s_lshr_b32 {sr(S_T)}, s2, 5")
        a.emit(f"s_lshl_b32 {sr(S_T)}, {sr(S_T)}, 3")
        a.emit(f"s_add_u32 {sr(S_T)}, {sr(S_T)}, {sr(S_W)}")
        a.emit(f"s_mul_i32 {sr(S_T2)}, {sr(S_T)}, {40*1024}")
        a.emit(f"s_add_u32 {sr(S_T2)}, {sr(S_T2)}, {WS_OB}")
        a.emit(f"s_add_u32 {sr(S_OB)}, {sr(S_WS)}, {sr(S_T2)}")
        a.emit(f"s_addc_u32 {sr(S_OB+1)}, {sr(S_WS+1)}, 0")
        a.emit(f"s_lshl_b32 {sr(S_T)}, {sr(S_T)}, 5")
        a.emit(f"s_add_u32 {sr(S_T)}, {sr(S_T)}, {sr(S_HB)}")
        a.emit(f"s_mul_i32 {sr(S_T)}, {sr(S_T)}, 2560")
        a.emit(f"s_add_u32 {sr(S_T)}, {sr(S_T)}, {WS_PHIQ}")
        a.emit(f"s_add_u32 {sr(S_PQ)}, {sr(S_WS)}, {sr(S_T)}")
        a.emit(f"s_addc_u32 {sr(S_PQ+1)}, {sr(S_WS+1)}, 0")
    a.emit(f"s_mov_b32 {sr(S_T4)}, 1024")
    a.emit("s_waitcnt vmcnt(18)")
    for r in (8, 4, 2, 1):
        a.emit(f"v_max_f32_dpp {vr(V_KM)}, {vr(V_KM)}, {vr(V_KM)} row_ror:{r} row_mask:0xf bank_mask:0xf")
        a.emit("s_nop 1")
    a.emit(f"v_readlane_b32 {sr(S_T)}, {vr(V_KM)}, 0")
    a.emit(f"v_readlane_b32 {sr(S_T2)}, {vr(V_KM)}, 16")
    a.emit(f"v_readlane_b32 {sr(S_LO)}, {vr(V_KM)}, 32")
    a.emit(f"v_readlane_b32 {sr(S_LO+1)}, {vr(V_KM)}, 48")
    a.emit(f"s_max_u32 {sr(S_T)}, {sr(S_T)}, {sr(S_T2)}")
    a.emit(f"s_max_u32 {sr(S_LO)}, {sr(S_LO)}, {sr(S_LO+1)}")
    a.emit(f"s_max_u32 {sr(S_T)}, {sr(S_T)}, {sr(S_LO)}")
    a.emit(f"v_sqrt_f32 {vr(V_KM)}, {sr(S_T)}")
    a.emit(f"s_mul_i32 {sr(S_T2)}, {sr(S_RB)}, {40*1024}")
    a.emit(f"s_add_u32 {sr(S_T2)}, {sr(S_T2)}, {WS_OA}")
    a.emit(f"v_mul_f32 {vr(V_KM)}, 0x3f828f5c, {vr(V_KM)}")
    a.emit(f"s_add_u32 {sr(S_OA)}, {sr(S_WS)}, {sr(S_T2)}")
    a.emit(f"s_addc_u32 {sr(S_OA+1)}, {sr(S_WS+1)}, 0")
    a.emit("s_waitcnt vmcnt(14)")
    for p in range(2):
        a.emit(f"v_fma_f32 {vr(SH_+4*p+3)}, -{vr(SH_+4*p+2)}, {vr(V_KM)}, {sr(S_C60)}")
    for p in range(2):
        a.emit(f"v_cvt_pk_bf16_f32 {vr(SH_+4*p+3)}, {vr(SH_+4*p+3)}, 0")
    build_q2(a, [vr(SH_ + 4 * (j >> 1) + 3) for j in range(4)], ["0"] * 4)
    a.emit("s_waitcnt vmcnt(8)")
    for m in qk(a, S_, KV_, 0): m()
    stamp(a, 1, prof)
    if prof: a.emit("s_waitcnt lgkmcnt(0)")
    a.emit(f"s_mov_b32 {sr(S_CNT)}, 4")
    if prio:
        a.emit(f"s_cmp_lt_u32 {sr(S_W)}, 4")
        a.emit(f"s_cbranch_scc1 {name}_p2")
        a.emit("s_setprio 1")
        a.emit(f"s_branch {name}_p3")
        a.label(f"{name}_p2")
        a.emit("s_setprio 2")
        a.label(f"{name}_p3")
    a.emit("s_nop 7")
    a.emit("s_nop 7")
    a(".p2align 6")
    a.label(f"{name}_loop")
    for n in range(16):
        slot(a, n, name, yield_at if prio else -1, withB)
    a.emit(f"s_cbranch_scc1 {name}_loop")
    stamp(a, 2, prof)
    mfma(a, O_ + 48, KV_ + 48 + 8, P_ + 8, O_ + 48)
    mfma(a, O_ + 48, KV_ + 48 + 12, P_ + 12, O_ + 48)
    PQ = KV_
    if withB:
        a.emit("s_waitcnt vmcnt(0)")
        a.emit(f"v_lshlrev_b32 {vr(V_T0)}, 3, {vr(V_LANE)}")
        a.emit(f"global_load_dwordx4 {vr(PQ,4)}, {vr(V_L16)}, {sr(S_PQ,2)}")
        a.emit(f"global_load_dwordx4 {vr(PQ+4,4)}, {vr(V_L16)}, {sr(S_PQ,2)} offset:1024")
        a.emit(f"global_load_dwordx2 {vr(PQ+8,2)}, {vr(V_T0)}, {sr(S_PQ,2)} offset:2048")
    R = S_
    for kq in range(4):
        if kq < 3:
            a.emit(f"s_cmp_lg_u32 {sr(S_KQ)}, {kq}")
            a.emit(f"s_cbranch_scc1 {name}_red{kq+1}")
        order = [j for j in (0, 1, 2, 3) if j != kq]
        for j in order:
            src = (kq - j - 1) & 3
            if j == 3: a.emit("s_nop 7"); a.emit("s_nop 3")
            for f in range(3):
                a.emit(f"ds_write_b128 {vr(V_WR)}, {vr(O_+16*j+4*f,4)} offset:{(j*3+src)*3072+f*1024}")
        a.emit("s_waitcnt lgkmcnt(0)")
        a.emit("s_barrier")
        for s in range(3):
            for f in range(3):
                a.emit(f"ds_read_b128 {vr(R+12*s+4*f,4)}, {vr(V_RD)} offset:{s*3072+f*1024}")
        if kq == 3: a.emit("s_nop 3")
        a.emit("s_waitcnt lgkmcnt(6)")
        for i in range(6):
            a.emit(f"v_pk_add_f32 {vr(R+2*i,2)}, {vr(R+2*i,2)}, {vr(O_+16*kq+2*i,2)}")
        if kq < 3:
            a.emit(f"s_branch {name}_redj")
            a.label(f"{name}_red{kq+1}")
    a.label(f"{name}_redj")
    BA = O_
    if withB:
        a.emit(f"s_cmp_lt_u32 {sr(S_W)}, 5")
        a.emit(f"s_cbranch_scc0 {name}_ba0")
        a.emit(f"s_lshl_b32 {sr(S_T)}, {sr(S_W)}, 10")
        a.emit(f"s_add_u32 {sr(S_T)}, {sr(S_T)}, {KVL}")
        a.emit(f"v_add_u32 {vr(V_T0)}, {sr(S_T)}, {vr(V_L16)}")
        a.emit(f"v_add_u32 {vr(V_T1)}, {8*5120}, {vr(V_T0)}")
        a.emit("s_waitcnt lgkmcnt(0)")
        for rb in range(16):
            a.emit(f"ds_read_b128 {vr(BA+4*rb,4)}, {vr(V_T0 if rb < 8 else V_T1)} offset:{(rb%8)*5120}")
        a.label(f"{name}_ba0")
    a.emit(f"s_waitcnt lgkmcnt({15 if False else 0})") if not withB else None
    if withB:
        a.emit(f"s_cmp_lt_u32 {sr(S_W)}, 5")
        a.emit(f"s_cbranch_scc1 {name}_ba1")
        a.emit("s_waitcnt lgkmcnt(0)")
        a.label(f"{name}_ba1")
    for i in range(6):
        a.emit(f"v_pk_add_f32 {vr(R+12+2*i,2)}, {vr(R+12+2*i,2)}, {vr(R+24+2*i,2)}")
    for i in (4, 5, 0, 1, 2, 3):
        a.emit(f"v_pk_add_f32 {vr(R+2*i,2)}, {vr(R+2*i,2)}, {vr(R+12+2*i,2)}")
    a.label(f"{name}_fin")
    finalize(a, R, V_AD, S_OA)
    a.emit(f"s_mov_b32 {sr(S_T)}, 0x21800000")
    a.emit(f"s_mov_b32 {sr(S_T2)}, 0x7b800000")
    a.emit(f"v_cmp_le_f32 vcc, {sr(S_T)}, {vr(V_T3)}")
    a.emit(f"v_cmp_ge_f32 {sr(S_LO,2)}, {sr(S_T2)}, {vr(V_T3)}")
    a.emit("s_nop 1")
    a.emit(f"s_and_b64 vcc, vcc, {sr(S_LO,2)}")
    a.emit("s_cmp_eq_u64 vcc, -1")
    a.emit(f"s_cbranch_scc0 {name}_fb")
    a.label(f"{name}_afterA")
    if withB:
        a.emit(f"s_cmp_lt_u32 {sr(S_W)}, 5")
        a.emit(f"s_cbranch_scc0 {name}_bb")
        a.emit("s_waitcnt lgkmcnt(0)")
        for st in (8, 4, 2, 1):
            for rb in range(st):
                a.emit(f"v_pk_add_f32 {vr(BA+4*rb,2)}, {vr(BA+4*rb,2)}, {vr(BA+4*(rb+st),2)}")
                a.emit(f"v_pk_add_f32 {vr(BA+4*rb+2,2)}, {vr(BA+4*rb+2,2)}, {vr(BA+4*(rb+st)+2,2)}")
        a.emit(f"v_cvt_pk_bf16_f32 {vr(BA)}, {vr(BA)}, {vr(BA+1)}")
        a.emit(f"v_cvt_pk_bf16_f32 {vr(BA+1)}, {vr(BA+2)}, {vr(BA+3)}")
        a.emit(f"s_lshl_b32 {sr(S_T)}, {sr(S_W)}, 9")
        a.emit(f"s_add_u32 {sr(S_T)}, {sr(S_T)}, {AFL}")
        a.emit(f"v_lshlrev_b32 {vr(V_T0)}, 3, {vr(V_LANE)}")
        a.emit(f"v_add_u32 {vr(V_T0)}, {sr(S_T)}, {vr(V_T0)}")
        a.emit(f"ds_write_b64 {vr(V_T0)}, {vr(BA,2)}")
        a.emit("s_waitcnt lgkmcnt(0)")
        a.label(f"{name}_bb")
        a.emit("s_barrier")
        AFR = O_ + 16
        a.emit(f"v_lshlrev_b32 {vr(V_T0)}, 3, {vr(V_LANE)}")
        a.emit(f"v_add_u32 {vr(V_T0)}, {AFL}, {vr(V_T0)}")
        for i in range(5):
            a.emit(f"ds_read_b64 {vr(AFR+2*i,2)}, {vr(V_T0)} offset:{i*512}")
        a.emit(f"v_mov_b32 {vr(AFR+10)}, 0"); a.emit(f"v_mov_b32 {vr(AFR+11)}, 0")
        a.emit(f"v_mov_b32 {vr(PQ+10)}, 0"); a.emit(f"v_mov_b32 {vr(PQ+11)}, 0")
        a.emit("s_waitcnt lgkmcnt(0) vmcnt(0)")
        D = O_ + 32
        mfma(a, D, AFR, PQ, None)
        mfma(a, D, AFR + 4, PQ + 4, D)
        mfma(a, D, AFR + 8, PQ + 8, D)
        a.emit("s_nop 7"); a.emit("s_nop 3")
        for i in range(12): a.emit(f"v_mov_b32 {vr(R+i)}, {vr(D+i)}")
        finalize(a, R, V_AB, S_OB, eps="0x358637bd")
    a.emit(f"s_branch {name}_done")
    a.label(f"{name}_fb")
    FQ1 = S_ + 24
    FQ2 = S_ + 28
    FSH = S_ + 30
    FO = P_
    FS = KV_ + 16
    FK = KV_ + 32
    FP = KV_ + 48
    FA = V_WR
    FM = V_RD
    for kq in range(4):
        if kq < 3:
            a.emit(f"s_cmp_lg_u32 {sr(S_KQ)}, {kq}")
            a.emit(f"s_cbranch_scc1 {name}_fq{kq+1}")
        for i in range(4): a.emit(f"v_mov_b32 {vr(FQ1+i)}, {vr(Q1_+4*kq+i)}")
        for i in range(2): a.emit(f"v_mov_b32 {vr(FSH+i)}, {vr(SH_+4*(kq>>1)+i)}")
        if kq < 3:
            a.emit(f"s_branch {name}_fqj")
            a.label(f"{name}_fq{kq+1}")
    a.label(f"{name}_fqj")
    a.emit(f"s_and_b32 {sr(S_T)}, {sr(S_KQ)}, 1")
    a.emit(f"s_cmp_eq_u32 {sr(S_T)}, 0")
    a.emit(f"s_cselect_b64 {sr(S_DM,2)}, {sr(S_MLO,2)}, {sr(S_MHI,2)}")
    a.emit(f"s_lshl_b32 {sr(S_T)}, {sr(S_T)}, 3")
    a.emit(f"v_add_u32 {vr(FA)}, {sr(S_T)}, {vr(V_L16)}")
    a.emit(f"s_add_u32 {sr(S_KV0)}, {sr(S_WS)}, {WS_KV}")
    a.emit(f"s_addc_u32 {sr(S_KV0+1)}, {sr(S_WS+1)}, 0")
    a.emit(f"v_cndmask_b32 {vr(FQ2)}, 0, {vr(FSH)}, {sr(S_DM,2)}")
    a.emit(f"v_cndmask_b32 {vr(FQ2+1)}, 0, {vr(FSH+1)}, {sr(S_DM,2)}")
    a.emit(f"v_mov_b32 {vr(FM)}, 0xff800000")
    for ps in range(2):
        a.emit(f"s_mov_b32 {sr(S_KV)}, {sr(S_KV0)}")
        a.emit(f"s_mov_b32 {sr(S_KV+1)}, {sr(S_KV0+1)}")
        a.emit(f"s_mov_b32 {sr(S_CNT)}, 64")
        if ps == 1:
            for i in range(16): a.emit(f"v_mov_b32 {vr(FO+i)}, 0")
        a.label(f"{name}_fl{ps}")
        a.emit(f"global_load_dwordx4 {vr(FK,4)}, {vr(V_L16)}, {sr(S_KV,2)}")
        a.emit(f"global_load_dwordx2 {vr(FK+4,2)}, {vr(FA)}, {sr(S_KV,2)} offset:1024")
        if ps == 1:
            a.emit(f"global_load_dwordx4 {vr(FK+6,4)}, {vr(V_L16)}, {sr(S_KV,2)} offset:2048")
            a.emit(f"global_load_dwordx4 {vr(FK+10,4)}, {vr(V_L16)}, {sr(S_KV,2)} offset:3072")
        kvadv(a)
        a.emit("s_waitcnt vmcnt(0)")
        mfma(a, FS, FK, FQ1, None)
        mfma8(a, FS, FK + 4, FQ2, FS)
        a.emit("s_nop 7"); a.emit("s_nop 7")
        if ps == 0:
            for i in range(8):
                a.emit(f"v_max3_f32 {vr(FM)}, {vr(FS+2*i)}, {vr(FS+2*i+1)}, {vr(FM)}")
        else:
            for i in range(16): a.emit(f"v_exp_f32 {vr(FS+i)}, {vr(FS+i)}")
            a.emit("s_nop 0")
            for i in range(8): a.emit(f"v_cvt_pk_bf16_f32 {vr(FP+i)}, {vr(FS+2*i)}, {vr(FS+2*i+1)}")
            a.emit("s_nop 1")
            mfma(a, FO, FK + 6, FP, FO)
            mfma(a, FO, FK + 10, FP + 4, FO)
        a.emit(f"s_sub_u32 {sr(S_CNT)}, {sr(S_CNT)}, 1")
        a.emit(f"s_cmp_lg_u32 {sr(S_CNT)}, 0")
        a.emit(f"s_cbranch_scc1 {name}_fl{ps}")
        if ps == 0:
            t = FS; h = FS + 1; m_ = FS + 2; t0 = FS + 3; t1 = FS + 4
            a.emit(f"v_mov_b32 {vr(V_T2)}, {vr(FM)}")
            a.emit(f"v_mov_b32 {vr(V_T3)}, {vr(FM)}")
            a.emit("s_nop 1")
            a.emit(f"v_permlane32_swap_b32 {vr(V_T2)}, {vr(V_T3)}")
            a.emit("s_nop 1")
            a.emit(f"v_max_f32 {vr(FM)}, {vr(V_T2)}, {vr(V_T3)}")
            a.emit(f"v_sub_f32 {vr(t)}, 0, {vr(FM)}")
            a.emit(f"v_cvt_pk_bf16_f32 {vr(h)}, {vr(t)}, 0")
            a.emit(f"v_lshlrev_b32 {vr(h)}, 16, {vr(h)}")
            a.emit(f"v_sub_f32 {vr(t)}, {vr(t)}, {vr(h)}")
            a.emit(f"v_cvt_pk_bf16_f32 {vr(m_)}, {vr(t)}, 0")
            a.emit(f"v_lshlrev_b32 {vr(m_)}, 16, {vr(m_)}")
            a.emit(f"v_sub_f32 {vr(t)}, {vr(t)}, {vr(m_)}")
            a.emit(f"v_cvt_pk_bf16_f32 {vr(t1)}, {vr(t)}, 0")
            a.emit(f"v_cvt_pk_bf16_f32 {vr(t0)}, {vr(h)}, {vr(m_)}")
            a.emit(f"v_cndmask_b32 {vr(FQ2)}, {vr(t0)}, {vr(FSH)}, {sr(S_DM,2)}")
            a.emit(f"v_cndmask_b32 {vr(FQ2+1)}, {vr(t1)}, {vr(FSH+1)}, {sr(S_DM,2)}")
    a.emit("s_nop 7"); a.emit("s_nop 7")
    for i in range(12): a.emit(f"v_mov_b32 {vr(R+i)}, {vr(FO+i)}")
    finalize(a, R, V_AD, S_OA)
    if withB:
        pass
    a.emit(f"s_branch {name}_afterA")
    a.label(f"{name}_done")
    stamp(a, 3, prof)
    stamp_store(a, prof, S_WS, S_W, V_T0, V_T1, 4, WS_PROF + (1 << 20))
    a.label(f"{name}_end")
    a.emit("s_endpgm")
    desc = f"""
.amdhsa_kernel {name}
  .amdhsa_next_free_vgpr {NV}
  .amdhsa_next_free_sgpr 100
  .amdhsa_accum_offset {NV}
  .amdhsa_group_segment_fixed_size 0
  .amdhsa_kernarg_size 96
  .amdhsa_user_sgpr_count 2
  .amdhsa_user_sgpr_kernarg_segment_ptr 1
  .amdhsa_system_sgpr_workgroup_id_x 1
.end_amdhsa_kernel
"""
    launch = f"; @launch kernel={name} grid=(256,1,1) block=(512,1,1) lds={LDS_BYTES}"
    return a.text(), desc, launch
```

```python
MB = 1 << 20
WS_QF   = 0
WS_KV   = 4 * MB
WS_KMAX = 4 * MB + 512 * 1024
WS_OA   = 5 * MB
WS_OB   = 8 * MB
WS_PHIQ = 11 * MB
WS_KVP  = 17 * MB
WS_PROF = 24 * MB
CSCALE = (20 ** -0.5) * 1.4426950408889634
WS_KVR  = 20 * MB
WS_CNT  = 21 * MB
```

```python
from asm import *
from layout import *

ACC = 0
BF = 80
AF = 160
M_ = 200
V_LANE = M_
V_L16 = M_ + 1
OPRE = 4
V_T0 = M_ + 2; V_T1 = M_ + 3; V_T2 = M_ + 4; V_T3 = M_ + 5
V_AB = M_ + 6
V_OUT = M_ + 8
V_LO = M_ + 8
NV = 224
S_WS = 4; S_W = 10; S_T = 14; S_T2 = 15; S_PART = 11; S_RB = 12; S_CG = 13
S_WO = 16
S_O = 18
S_OUT = 20
S_RT = 22; S_KH = 23; S_M0 = 25
STAGE = 20480
NBUF = 6
LDS_BYTES = NBUF * STAGE

def mfma(a, d, A, B, C):
    c = "0" if C is None else vr(C, 16)
    a.emit(f"v_mfma_f32_32x32x16_bf16 {vr(d,16)}, {vr(A,4)}, {vr(B,4)}, {c}")

def common_ids(a):
    a.emit(f"s_and_b32 {sr(S_T)}, s2, 7")
    a.emit(f"s_lshr_b32 {sr(S_T2)}, s2, 3")
    a.emit(f"s_lshr_b32 {sr(S_PART)}, {sr(S_T)}, 2")
    a.emit(f"s_and_b32 {sr(S_T)}, {sr(S_T)}, 3")
    a.emit(f"s_lshl_b32 {sr(S_T)}, {sr(S_T)}, 3")
    a.emit(f"s_lshr_b32 {sr(S_RB)}, {sr(S_T2)}, 2")
    a.emit(f"s_add_u32 {sr(S_RB)}, {sr(S_RB)}, {sr(S_T)}")
    a.emit(f"s_and_b32 {sr(S_CG)}, {sr(S_T2)}, 3")

def div20(a, dst_row, dst_seg, p):
    a.emit(f"v_mul_u32_u24 {vr(dst_row)}, 3277, {vr(p)}")
    a.emit(f"v_lshrrev_b32 {vr(dst_row)}, 16, {vr(dst_row)}")
    a.emit(f"v_mul_u32_u24 {vr(dst_seg)}, 20, {vr(dst_row)}")
    a.emit(f"v_sub_u32 {vr(dst_seg)}, {vr(p)}, {vr(dst_seg)}")

def tr_base(a, dst, lane, t0, t1, rowbytes):
    a.emit(f"v_lshrrev_b32 {vr(t0)}, 5, {vr(lane)}")
    a.emit(f"v_lshlrev_b32 {vr(t0)}, 3, {vr(t0)}")
    a.emit(f"v_bfe_u32 {vr(t1)}, {vr(lane)}, 2, 2")
    a.emit(f"v_add_u32 {vr(t0)}, {vr(t0)}, {vr(t1)}")
    a.emit(f"v_mul_u32_u24 {vr(t0)}, {rowbytes}, {vr(t0)}")
    a.emit(f"v_bfe_u32 {vr(t1)}, {vr(lane)}, 4, 1")
    a.emit(f"v_lshl_add_u32 {vr(t0)}, {vr(t1)}, 5, {vr(t0)}")
    a.emit(f"v_and_b32 {vr(t1)}, 3, {vr(lane)}")
    a.emit(f"v_lshl_add_u32 {vr(dst)}, {vr(t1)}, 3, {vr(t0)}")

def gen_oproj(name="oproj_kernel", prof=False):
    a = Asm()
    a(f".p2align 8\n.globl {name}\n.type {name},@function")
    a.label(name)
    a.emit("s_cmp_ge_u32 s2, 256")
    a.emit(f"s_cbranch_scc1 {name}_end")
    stamp(a, 0, prof)
    a.emit(f"s_load_dwordx2 {sr(S_WS,2)}, s[0:1], 88")
    a.emit(f"s_load_dwordx2 s[6:7], s[0:1], 32")
    a.emit(f"s_load_dwordx2 s[8:9], s[0:1], 64")
    a.emit(f"s_load_dwordx2 {sr(S_OUT,2)}, s[0:1], 72")
    a.emit(f"v_lshrrev_b32 {vr(V_T0)}, 6, v0")
    a.emit(f"v_and_b32 {vr(V_LANE)}, 63, v0")
    a.emit(f"v_readfirstlane_b32 {sr(S_W)}, {vr(V_T0)}")
    common_ids(a)
    a.emit(f"s_cmp_ge_u32 {sr(S_W)}, 4")
    a.emit(f"s_cbranch_scc1 {name}_loader")
    a.emit(f"s_and_b32 {sr(S_RT)}, {sr(S_W)}, 1")
    a.emit(f"s_lshr_b32 {sr(S_KH)}, {sr(S_W)}, 1")
    a.emit(f"s_lshl_b32 {sr(S_T)}, {sr(S_RB)}, 1")
    a.emit(f"s_add_u32 {sr(S_T)}, {sr(S_T)}, {sr(S_RT)}")
    a.emit(f"s_mul_i32 {sr(S_T)}, {sr(S_T)}, 40")
    a.emit(f"s_mul_i32 {sr(S_T2)}, {sr(S_KH)}, 20")
    a.emit(f"s_add_u32 {sr(S_T)}, {sr(S_T)}, {sr(S_T2)}")
    a.emit(f"s_lshl_b32 {sr(S_T)}, {sr(S_T)}, 10")
    a.emit(f"s_mul_i32 {sr(S_T2)}, {sr(S_PART)}, {WS_OB - WS_OA}")
    a.emit(f"s_add_u32 {sr(S_T)}, {sr(S_T)}, {sr(S_T2)}")
    a.emit(f"s_add_u32 {sr(S_T)}, {sr(S_T)}, {WS_OA}")
    a.emit(f"v_lshlrev_b32 {vr(V_T1)}, 4, {vr(V_LANE)}")
    a.emit("s_waitcnt lgkmcnt(0)")
    a.emit(f"s_add_u32 {sr(S_O)}, {sr(S_WS)}, {sr(S_T)}")
    a.emit(f"s_addc_u32 {sr(S_O+1)}, {sr(S_WS+1)}, 0")
    a.emit(f"v_mov_b32 {vr(V_L16)}, {vr(V_T1)}")
    def oload(k):
        if k and k % 4 == 0:
            a.emit(f"s_add_u32 {sr(S_O)}, {sr(S_O)}, 4096")
            a.emit(f"s_addc_u32 {sr(S_O+1)}, {sr(S_O+1)}, 0")
        a.emit(f"global_load_dwordx4 {vr(BF+4*k,4)}, {vr(V_L16)}, {sr(S_O,2)} offset:{(k%4)*1024}")
    for k in range(OPRE): oload(k)
    tr_base(a, V_T2, V_LANE, V_T0, V_T3, 320)
    a.emit(f"s_mul_i32 {sr(S_T)}, {sr(S_KH)}, 10240")
    a.emit(f"v_add_u32 {vr(V_AB)}, {sr(S_T)}, {vr(V_T2)}")
    a.emit(f"v_add_u32 {vr(V_AB+1)}, {3*STAGE}, {vr(V_AB)}")
    a.emit(f"s_lshl_b32 {sr(S_T)}, {sr(S_RB)}, 6")
    a.emit(f"s_lshl_b32 {sr(S_T2)}, {sr(S_RT)}, 5")
    a.emit(f"s_add_u32 {sr(S_T)}, {sr(S_T)}, {sr(S_T2)}")
    a.emit(f"s_mul_i32 {sr(S_T)}, {sr(S_T)}, 2560")
    a.emit(f"s_mul_i32 {sr(S_T2)}, {sr(S_PART)}, 1280")
    a.emit(f"s_add_u32 {sr(S_T)}, {sr(S_T)}, {sr(S_T2)}")
    a.emit(f"s_mul_i32 {sr(S_T2)}, {sr(S_CG)}, 320")
    a.emit(f"s_add_u32 {sr(S_T)}, {sr(S_T)}, {sr(S_T2)}")
    a.emit(f"s_mul_i32 {sr(S_T2)}, {sr(S_KH)}, 160")
    a.emit(f"s_add_u32 {sr(S_T)}, {sr(S_T)}, {sr(S_T2)}")
    a.emit(f"s_add_u32 {sr(S_OUT)}, {sr(S_OUT)}, {sr(S_T)}")
    a.emit(f"s_addc_u32 {sr(S_OUT+1)}, {sr(S_OUT+1)}, 0")
    for i in range(5):
        a.emit(f"v_add_u32 {vr(V_T0)}, {64*i}, {vr(V_LANE)}")
        a.emit(f"v_mul_u32_u24 {vr(V_T1)}, 6554, {vr(V_T0)}")
        a.emit(f"v_lshrrev_b32 {vr(V_T1)}, 16, {vr(V_T1)}")
        a.emit(f"v_mul_u32_u24 {vr(V_T2)}, 10, {vr(V_T1)}")
        a.emit(f"v_sub_u32 {vr(V_T2)}, {vr(V_T0)}, {vr(V_T2)}")
        a.emit(f"v_mul_u32_u24 {vr(V_T1)}, 2560, {vr(V_T1)}")
        a.emit(f"v_lshl_add_u32 {vr(V_OUT+i)}, {vr(V_T2)}, 4, {vr(V_T1)}")
    def rd(ks, t):
        c = ks >> 1; s = ks & 1; buf = c % NBUF
        base = V_AB + (buf // 3); off = (buf % 3) * STAGE + s * 5120 + t * 64
        st = AF + 20 * (ks & 1) + 4 * t
        a.emit(f"ds_read_b64_tr_b16 {vr(st,2)}, {vr(base)} offset:{off}")
        a.emit(f"ds_read_b64_tr_b16 {vr(st+2,2)}, {vr(base)} offset:{off+1280}")
    a.emit("s_barrier")
    stamp(a, 1, prof)
    if prof: a.emit("s_waitcnt lgkmcnt(0)")
    for t in range(5): rd(0, t)
    a.emit(f"s_waitcnt lgkmcnt(8) vmcnt({OPRE-1})")
    for ks in range(20):
        for t in range(5):
            mfma(a, ACC + 16 * t, AF + 20 * (ks & 1) + 4 * t, BF + 4 * ks, None if ks == 0 else ACC + 16 * t)
            if ks < 19:
                w = "s_waitcnt lgkmcnt(6)"
                if t == 4: w += f" vmcnt({min(OPRE-1, 18-ks)})"
                a.emit(w)
                if t == 2 and ks + OPRE < 20: oload(ks + OPRE)
                if t == 0 and (ks & 1): a.emit("s_barrier")
                rd(ks + 1, t)
            elif t < 4:
                a.emit(f"s_waitcnt lgkmcnt({2*(3-t)})")
    stamp(a, 2, prof)
    if prof: a.emit("s_waitcnt lgkmcnt(0)")
    a.emit("s_barrier")
    a.emit(f"v_lshlrev_b32 {vr(V_T1)}, 4, {vr(V_LANE)}")
    a.emit(f"s_mul_i32 {sr(S_T)}, {sr(S_W)}, 10240")
    a.emit(f"v_add_u32 {vr(V_T0)}, {sr(S_T)}, {vr(V_T1)}")
    a.emit(f"s_xor_b32 {sr(S_T2)}, {sr(S_W)}, 2")
    a.emit(f"s_mul_i32 {sr(S_T2)}, {sr(S_T2)}, 10240")
    a.emit(f"v_add_u32 {vr(V_T2)}, {sr(S_T2)}, {vr(V_T1)}")
    a.emit(f"s_cmp_eq_u32 {sr(S_KH)}, 0")
    a.emit(f"s_cbranch_scc0 {name}_k1")
    for var in range(2):
        keep = 0 if var == 0 else 40
        send = 40 - keep
        if var == 0: a.emit("s_nop 3")
        order = list(range(10))
        for i in order:
            a.emit(f"ds_write_b128 {vr(V_T0)}, {vr(ACC+send+4*i,4)} offset:{i*1024}")
        a.emit("s_waitcnt lgkmcnt(0)")
        a.emit("s_barrier")
        for i in range(10):
            a.emit(f"ds_read_b128 {vr(BF+4*i,4)}, {vr(V_T2)} offset:{i*1024}")
        for i in range(10):
            a.emit(f"s_waitcnt lgkmcnt({9-i})")
            a.emit(f"v_pk_add_f32 {vr(BF+4*i,2)}, {vr(BF+4*i,2)}, {vr(ACC+keep+4*i,2)}")
            a.emit(f"v_pk_add_f32 {vr(BF+4*i+2,2)}, {vr(BF+4*i+2,2)}, {vr(ACC+keep+4*i+2,2)}")
        if var == 0:
            a.emit(f"s_branch {name}_fin")
            a.label(f"{name}_k1")
    a.label(f"{name}_fin")
    for q in range(10):
        a.emit(f"v_cvt_pk_bf16_f32 {vr(AF+2*q)}, {vr(BF+4*q)}, {vr(BF+4*q+1)}")
        a.emit(f"v_cvt_pk_bf16_f32 {vr(AF+2*q+1)}, {vr(BF+4*q+2)}, {vr(BF+4*q+3)}")
    TA = 40960
    a.emit(f"v_and_b32 {vr(V_T0)}, 31, {vr(V_LANE)}")
    a.emit(f"v_mul_u32_u24 {vr(V_T0)}, 176, {vr(V_T0)}")
    a.emit(f"v_lshrrev_b32 {vr(V_T1)}, 5, {vr(V_LANE)}")
    a.emit(f"v_lshl_add_u32 {vr(V_T0)}, {vr(V_T1)}, 3, {vr(V_T0)}")
    a.emit(f"s_mul_i32 {sr(S_T)}, {sr(S_W)}, 5632")
    a.emit(f"s_add_u32 {sr(S_T)}, {sr(S_T)}, {TA}")
    a.emit(f"v_add_u32 {vr(V_T0)}, {sr(S_T)}, {vr(V_T0)}")
    for q in range(10):
        a.emit(f"ds_write_b64 {vr(V_T0)}, {vr(AF+2*q,2)} offset:{q*16}")
    for i in range(5):
        a.emit(f"v_add_u32 {vr(V_T1)}, {64*i}, {vr(V_LANE)}")
        a.emit(f"v_mul_u32_u24 {vr(V_T2)}, 6554, {vr(V_T1)}")
        a.emit(f"v_lshrrev_b32 {vr(V_T2)}, 16, {vr(V_T2)}")
        a.emit(f"v_lshlrev_b32 {vr(V_T1)}, 4, {vr(V_T1)}")
        a.emit(f"v_lshl_add_u32 {vr(BF+40+i)}, {vr(V_T2)}, 4, {vr(V_T1)}")
        a.emit(f"v_add_u32 {vr(BF+40+i)}, {sr(S_T)}, {vr(BF+40+i)}")
    a.emit("s_waitcnt lgkmcnt(0)")
    for i in range(5):
        a.emit(f"ds_read_b128 {vr(BF+4*i,4)}, {vr(BF+40+i)}")
    for i in range(5):
        a.emit(f"s_waitcnt lgkmcnt({4-i})")
        a.emit(f"global_store_dwordx4 {vr(V_OUT+i)}, {vr(BF+4*i,4)}, {sr(S_OUT,2)}")
    stamp(a, 3, prof)
    stamp_store(a, prof, S_WS, S_W, V_T0, V_T1, 8, WS_PROF)
    a.emit("s_endpgm")
    a.label(f"{name}_loader")
    a.emit(f"s_sub_u32 {sr(S_W)}, {sr(S_W)}, 4")
    a.emit(f"s_lshr_b32 {sr(S_KH)}, {sr(S_W)}, 1")
    a.emit(f"s_and_b32 {sr(S_RT)}, {sr(S_W)}, 1")
    for n in range(5):
        a.emit(f"v_add_u32 {vr(V_T0)}, {64*n}, {vr(V_LANE)}")
        div20(a, V_T1, V_T2, V_T0)
        a.emit(f"v_mul_u32_u24 {vr(V_T1)}, 1280, {vr(V_T1)}")
        a.emit(f"v_lshl_add_u32 {vr(V_LO+n)}, {vr(V_T2)}, 4, {vr(V_T1)}")
    a.emit(f"s_mul_i32 {sr(S_T)}, {sr(S_KH)}, {320*1280}")
    a.emit(f"s_mul_i32 {sr(S_T2)}, {sr(S_RT)}, {16*1280}")
    a.emit(f"s_add_u32 {sr(S_T)}, {sr(S_T)}, {sr(S_T2)}")
    a.emit(f"s_mul_i32 {sr(S_T2)}, {sr(S_CG)}, 320")
    a.emit(f"s_add_u32 {sr(S_T)}, {sr(S_T)}, {sr(S_T2)}")
    a.emit(f"s_mul_i32 {sr(S_M0)}, {sr(S_KH)}, 10240")
    a.emit(f"s_mul_i32 {sr(S_T2)}, {sr(S_RT)}, 5120")
    a.emit(f"s_add_u32 {sr(S_M0)}, {sr(S_M0)}, {sr(S_T2)}")
    a.emit("s_waitcnt lgkmcnt(0)")
    a.emit(f"s_cmp_eq_u32 {sr(S_PART)}, 0")
    a.emit(f"s_cselect_b32 {sr(S_WO)}, s6, s8")
    a.emit(f"s_cselect_b32 {sr(S_WO+1)}, s7, s9")
    a.emit(f"s_add_u32 {sr(S_WO)}, {sr(S_WO)}, {sr(S_T)}")
    a.emit(f"s_addc_u32 {sr(S_WO+1)}, {sr(S_WO+1)}, 0")
    issued = []
    def chunk(c):
        buf = c % NBUF
        for n in range(5):
            a.emit(f"s_add_u32 m0, {sr(S_M0)}, {buf*STAGE + n*1024}")
            if n == 0 and c > 0:
                a.emit(f"s_add_u32 {sr(S_WO)}, {sr(S_WO)}, {32*1280}")
                a.emit(f"s_addc_u32 {sr(S_WO+1)}, {sr(S_WO+1)}, 0")
            else:
                a.emit("s_nop 0")
            a.emit(f"global_load_lds_dwordx4 {vr(V_LO+n)}, {sr(S_WO,2)}")
        issued.append(c)
    AHEAD = 3
    for c in range(AHEAD): chunk(c)
    for c in range(10):
        after = len([x for x in issued if x > c])
        a.emit(f"s_waitcnt vmcnt({5*after})")
        a.emit("s_barrier")
        if c + AHEAD < 10: chunk(c + AHEAD)
    a.emit("s_barrier")
    a.emit("s_barrier")
    a.label(f"{name}_end")
    a.emit("s_endpgm")
    desc = f"""
.amdhsa_kernel {name}
  .amdhsa_next_free_vgpr {NV}
  .amdhsa_next_free_sgpr 100
  .amdhsa_accum_offset {NV}
  .amdhsa_group_segment_fixed_size 0
  .amdhsa_kernarg_size 96
  .amdhsa_user_sgpr_count 2
  .amdhsa_user_sgpr_kernarg_segment_ptr 1
  .amdhsa_system_sgpr_workgroup_id_x 1
.end_amdhsa_kernel
"""
    launch = f"; @launch kernel={name} grid=(256,1,1) block=(512,1,1) lds={LDS_BYTES}"
    return a.text(), desc, launch
```

```python
from asm import *
from layout import *
from oproj import div20

ACC = 0
XT = 80
AF = 96
BFR = 144
WA = 152
XA = 158
E_ = 162
M_ = 200
V_LANE = M_
V_L16 = M_ + 1
V_T0 = M_ + 2; V_T1 = M_ + 3; V_T2 = M_ + 4; V_T3 = M_ + 5
V_LO = M_ + 6
NV = 224
S_WS = 4; S_W = 10; S_T = 14; S_T2 = 15
S_ROLE = 11
S_RB = 12; S_G = 13
S_X = 16; S_WB = 18; S_EX = 20
S_CNT = 22; S_M0X = 23; S_M0W = 24; S_M0E = 25; S_DELTA = 26; S_BUF = 27
S_WADV = 28; S_NC = 29
S_MLO = 30; S_MHI = 32
S_O = 34
S_EXM = 36
S_K1 = 38; S_K2 = 39; S_K3 = 40; S_K4 = 41
XS = 16384; WS_ = 20480
STAGE = XS + WS_
EXTRA = 4 * STAGE
LDS_BYTES = EXTRA + 10240
LOG2E = 0x3fb8aa3b
import struct
def f2u(x): return struct.unpack("<I", struct.pack("<f", x))[0]

def mfma(a, d, A, B, C):
    c = "0" if C is None else vr(C, 16)
    a.emit(f"v_mfma_f32_32x32x16_bf16 {vr(d,16)}, {vr(A,4)}, {vr(B,4)}, {c}")
def mfma8(a, d, A, B, C):
    c = "0" if C is None else vr(C, 16)
    a.emit(f"v_mfma_f32_32x32x8_bf16 {vr(d,16)}, {vr(A,2)}, {vr(B,2)}, {c}")

def ids(a):
    a.emit(f"s_and_b32 {sr(S_T)}, s2, 7")
    a.emit(f"s_lshr_b32 {sr(S_T2)}, s2, 3")
    a.emit(f"s_cmp_ge_u32 {sr(S_T2)}, 8")
    a.emit("s_cbranch_scc1 L1_idsB")
    a.emit(f"s_lshl_b32 {sr(S_RB)}, {sr(S_T)}, 1")
    a.emit(f"s_lshr_b32 {sr(S_T)}, {sr(S_T2)}, 2")
    a.emit(f"s_add_u32 {sr(S_RB)}, {sr(S_RB)}, {sr(S_T)}")
    a.emit(f"s_and_b32 {sr(S_G)}, {sr(S_T2)}, 3")
    a.emit(f"s_add_u32 {sr(S_ROLE)}, {sr(S_G)}, 1")
    a.emit(f"s_cmp_ge_u32 {sr(S_G)}, 2")
    a.emit(f"s_cselect_b32 {sr(S_ROLE)}, 0, {sr(S_ROLE)}")
    a.emit("s_branch L1_idsE")
    a.label("L1_idsB")
    a.emit(f"s_sub_u32 {sr(S_T2)}, {sr(S_T2)}, 8")
    a.emit(f"s_mul_i32 {sr(S_RB)}, {sr(S_T2)}, 43")
    a.emit(f"s_lshr_b32 {sr(S_RB)}, {sr(S_RB)}, 8")
    a.emit(f"s_mul_i32 {sr(S_G)}, {sr(S_RB)}, 6")
    a.emit(f"s_sub_u32 {sr(S_G)}, {sr(S_T2)}, {sr(S_G)}")
    a.emit(f"s_lshr_b32 {sr(S_T2)}, {sr(S_T)}, 1")
    a.emit(f"s_lshl_b32 {sr(S_T2)}, {sr(S_T2)}, 2")
    a.emit(f"s_add_u32 {sr(S_RB)}, {sr(S_RB)}, {sr(S_T2)}")
    a.emit(f"s_and_b32 {sr(S_T)}, {sr(S_T)}, 1")
    a.emit(f"s_cmp_lt_u32 {sr(S_G)}, 2")
    a.emit("s_cbranch_scc0 L1_idsKV")
    a.emit(f"s_mov_b32 {sr(S_ROLE)}, 3")
    a.emit(f"s_lshl_b32 {sr(S_T)}, {sr(S_T)}, 1")
    a.emit(f"s_add_u32 {sr(S_G)}, {sr(S_G)}, {sr(S_T)}")
    a.emit("s_branch L1_idsE")
    a.label("L1_idsKV")
    a.emit(f"s_mov_b32 {sr(S_ROLE)}, 4")
    a.emit(f"s_lshl_b32 {sr(S_T)}, {sr(S_T)}, 2")
    a.emit(f"s_add_u32 {sr(S_G)}, {sr(S_G)}, {sr(S_T)}")
    a.emit(f"s_sub_u32 {sr(S_G)}, {sr(S_G)}, 2")
    a.label("L1_idsE")

def kstep(a, s, extra):
    cur = s & 1; nxt = cur ^ 1
    ns = (s + 1) & 3
    nt = 6 if extra else 5
    for t in range(nt):
        if t < 5:
            mfma(a, ACC + 16 * t, AF + 24 * cur + 4 * t, BFR + 4 * cur, ACC + 16 * t)
        elif extra == 'K':
            mfma(a, XT, AF + 24 * cur + 20, BFR + 4 * cur, XT)
        else:
            mfma(a, XT, BFR + 4 * cur, AF + 24 * cur + 20, XT)
        if t < nt - 1:
            n_after = 2 * (nt - 2 - t) + (0 if t == 0 else 2 * t + 1)
        else:
            n_after = 2 * (nt - 2)
        a.emit(f"s_waitcnt lgkmcnt({n_after})")
        if t == 0:
            if s == 3:
                a.emit("s_barrier")
                for r in list(range(XA, XA + 4)) + list(range(WA, WA + 5)):
                    a.emit(f"v_add_u32 {vr(r)}, {sr(S_DELTA)}, {vr(r)}")
                if extra:
                    a.emit(f"v_add_u32 {vr(WA+5)}, {sr(S_NC)}, {vr(WA+5)}")
            a.emit(f"ds_read_b128 {vr(BFR+4*nxt,4)}, {vr(XA+ns)}")
        if t < 5:
            off = ns * 16 * 320
            a.emit(f"ds_read_b64_tr_b16 {vr(AF+24*nxt+4*t,2)}, {vr(WA+t)} offset:{off}")
            a.emit(f"ds_read_b64_tr_b16 {vr(AF+24*nxt+4*t+2,2)}, {vr(WA+t)} offset:{off+1280}")
        else:
            off = ns * 16 * 40
            a.emit(f"ds_read_b64_tr_b16 {vr(AF+24*nxt+20,2)}, {vr(WA+5)} offset:{off}")
            a.emit(f"ds_read_b64_tr_b16 {vr(AF+24*nxt+22,2)}, {vr(WA+5)} offset:{off+160}")

def mainloop(a, tag, extra, prof):
    nt = 6 if extra else 5
    a.emit("s_barrier")
    stamp(a, 1, prof)
    if prof: a.emit("s_waitcnt lgkmcnt(0)")
    a.emit(f"ds_read_b128 {vr(BFR,4)}, {vr(XA)}")
    for t in range(nt):
        if t < 5:
            a.emit(f"ds_read_b64_tr_b16 {vr(AF+4*t,2)}, {vr(WA+t)}")
            a.emit(f"ds_read_b64_tr_b16 {vr(AF+4*t+2,2)}, {vr(WA+t)} offset:1280")
        else:
            a.emit(f"ds_read_b64_tr_b16 {vr(AF+20,2)}, {vr(WA+5)}")
            a.emit(f"ds_read_b64_tr_b16 {vr(AF+22,2)}, {vr(WA+5)} offset:160")
    a.emit(f"s_mov_b32 {sr(S_CNT)}, 10")
    a.emit(f"s_mov_b32 {sr(S_BUF)}, 0")
    a.emit(f"s_mov_b32 {sr(S_K3)}, {STAGE}")
    a.emit(f"s_mov_b32 {sr(S_K4)}, 2560")
    a.emit(f"s_waitcnt lgkmcnt({2*(nt-1)})")
    a.label(f"L1_loop_{tag}")
    a.emit(f"s_cmp_eq_u32 {sr(S_BUF)}, 3")
    a.emit(f"s_cselect_b32 {sr(S_DELTA)}, {(-3*STAGE) & 0xffffffff}, {sr(S_K3)}")
    a.emit(f"s_cselect_b32 {sr(S_NC)}, {(-3*2560) & 0xffffffff}, {sr(S_K4)}")
    a.emit(f"s_add_u32 {sr(S_BUF)}, {sr(S_BUF)}, 1")
    a.emit(f"s_and_b32 {sr(S_BUF)}, {sr(S_BUF)}, 3")
    for s in range(4): kstep(a, s, extra)
    a.emit(f"s_sub_u32 {sr(S_CNT)}, {sr(S_CNT)}, 1")
    a.emit(f"s_cmp_lg_u32 {sr(S_CNT)}, 0")
    a.emit(f"s_cbranch_scc1 L1_loop_{tag}")
    a.emit("s_waitcnt lgkmcnt(0)")
    stamp(a, 2, prof)
    a.emit("s_nop 7")
    a.emit("s_nop 3")

def out_base(a, ws_off, mul_rb, mul_w, mul_g):
    a.emit(f"s_mul_i32 {sr(S_T)}, {sr(S_RB)}, {mul_rb}")
    a.emit(f"s_mul_i32 {sr(S_T2)}, {sr(S_W)}, {mul_w}")
    a.emit(f"s_add_u32 {sr(S_T)}, {sr(S_T)}, {sr(S_T2)}")
    a.emit(f"s_mul_i32 {sr(S_T2)}, {sr(S_G)}, {mul_g}")
    a.emit(f"s_add_u32 {sr(S_T)}, {sr(S_T)}, {sr(S_T2)}")
    a.emit(f"s_add_u32 {sr(S_T)}, {sr(S_T)}, {ws_off}")
    a.emit(f"s_add_u32 {sr(S_O)}, {sr(S_WS)}, {sr(S_T)}")
    a.emit(f"s_addc_u32 {sr(S_O+1)}, {sr(S_WS+1)}, 0")

def epi_AQ(a):
    out_base(a, WS_QF, 4 * 16 * 3072, 16 * 3072, 4 * 3072)
    for p in range(4):
        R = ACC + 20 * p
        e = E_; o = E_ + 1; sh = E_ + 2; t = E_ + 3
        P = AF + 12 * p
        a.emit(f"v_mul_f32 {vr(e)}, {vr(R)}, {vr(R)}")
        a.emit(f"v_mul_f32 {vr(o)}, {vr(R+12)}, {vr(R+12)}")
        a.emit(f"v_mul_f32 {vr(sh)}, {vr(R+8)}, {vr(R+8)}")
        for i in range(1, 8):
            a.emit(f"v_fmac_f32 {vr(e)}, {vr(R+i)}, {vr(R+i)}")
            a.emit(f"v_fmac_f32 {vr(o)}, {vr(R+12+i)}, {vr(R+12+i)}")
            if i < 4: a.emit(f"v_fmac_f32 {vr(sh)}, {vr(R+8+i)}, {vr(R+8+i)}")
        a.emit(f"v_cndmask_b32 {vr(t)}, 0, {vr(sh)}, {sr(S_MLO,2)}")
        a.emit(f"v_add_f32 {vr(e)}, {vr(e)}, {vr(t)}")
        a.emit(f"v_cndmask_b32 {vr(t)}, 0, {vr(sh)}, {sr(S_MHI,2)}")
        a.emit(f"v_add_f32 {vr(o)}, {vr(o)}, {vr(t)}")
        for i in range(4):
            a.emit(f"v_cvt_pk_bf16_f32 {vr(P+i)}, {vr(R+2*i)}, {vr(R+2*i+1)}")
        a.emit(f"v_permlane32_swap_b32 {vr(o)}, {vr(e)}")
        for i in range(4):
            a.emit(f"v_cvt_pk_bf16_f32 {vr(P+4+i)}, {vr(R+12+2*i)}, {vr(R+12+2*i+1)}")
        a.emit(f"v_add_f32 {vr(o)}, {vr(o)}, {vr(e)}")
        a.emit(f"v_cvt_pk_bf16_f32 {vr(P+8)}, {vr(R+8)}, {vr(R+9)}")
        a.emit(f"v_sqrt_f32 {vr(P+10)}, {vr(o)}")
        a.emit(f"v_cvt_pk_bf16_f32 {vr(P+9)}, {vr(R+10)}, {vr(R+11)}")
        a.emit(f"v_mov_b32 {vr(P+11)}, 0")
        for f in range(3):
            a.emit(f"global_store_dwordx4 {vr(V_L16)}, {vr(P+4*f,4)}, {sr(S_O,2)} offset:{f*1024}")
        if p < 3:
            a.emit(f"s_add_u32 {sr(S_O)}, {sr(S_O)}, 3072")
            a.emit(f"s_addc_u32 {sr(S_O+1)}, {sr(S_O+1)}, 0")

def epi_K(a):
    R = XT
    a.emit(f"s_mov_b32 {sr(S_K1)}, {f2u(CSCALE)}")
    for i in range(12): a.emit(f"v_mul_f32 {vr(R+i)}, {sr(S_K1)}, {vr(R+i)}")
    x = E_; y = E_ + 1; t = E_ + 2; t2 = E_ + 3
    a.emit(f"v_mul_f32 {vr(x)}, {vr(R)}, {vr(R)}")
    a.emit(f"v_mul_f32 {vr(y)}, {vr(R+8)}, {vr(R+8)}")
    for i in range(1, 8): a.emit(f"v_fmac_f32 {vr(x)}, {vr(R+i)}, {vr(R+i)}")
    for i in range(1, 4): a.emit(f"v_fmac_f32 {vr(y)}, {vr(R+8+i)}, {vr(R+8+i)}")
    a.emit(f"v_cndmask_b32 {vr(y)}, 0, {vr(y)}, {sr(S_MLO,2)}")
    a.emit(f"v_add_f32 {vr(x)}, {vr(x)}, {vr(y)}")
    P = E_ + 4
    for i in range(4): a.emit(f"v_cvt_pk_bf16_f32 {vr(P+i)}, {vr(R+2*i)}, {vr(R+2*i+1)}")
    a.emit(f"v_mov_b32 {vr(t)}, {vr(x)}")
    a.emit(f"v_cvt_pk_bf16_f32 {vr(R+12)}, {vr(R+8)}, {vr(R+9)}")
    a.emit(f"v_cvt_pk_bf16_f32 {vr(R+13)}, {vr(R+10)}, {vr(R+11)}")
    a.emit(f"v_permlane32_swap_b32 {vr(t)}, {vr(x)}")
    a.emit(f"v_mov_b32 {vr(R+14)}, 0x3f803f80")
    a.emit(f"v_mov_b32 {vr(R+15)}, 0x3f80")
    a.emit(f"v_add_f32 {vr(x)}, {vr(x)}, {vr(t)}")
    a.emit(f"v_cndmask_b32 {vr(P+4)}, {vr(R+14)}, {vr(R+12)}, {sr(S_MLO,2)}")
    a.emit(f"v_cndmask_b32 {vr(P+5)}, {vr(R+15)}, {vr(R+13)}, {sr(S_MLO,2)}")
    a.emit(f"v_cndmask_b32 {vr(P+6)}, {vr(R+14)}, {vr(R+12)}, {sr(S_MHI,2)}")
    a.emit(f"v_cndmask_b32 {vr(P+7)}, {vr(R+15)}, {vr(R+13)}, {sr(S_MHI,2)}")
    out_base(a, WS_KV, 4 * 4096, 4096, 0)
    a.emit(f"global_store_dwordx4 {vr(V_L16)}, {vr(P,4)}, {sr(S_O,2)}")
    a.emit(f"global_store_dwordx4 {vr(V_L16)}, {vr(P+4,4)}, {sr(S_O,2)} offset:1024")
    for r in (8, 4, 2, 1):
        a.emit(f"v_max_f32_dpp {vr(x)}, {vr(x)}, {vr(x)} row_ror:{r} row_mask:0xf bank_mask:0xf")
        a.emit("s_nop 1")
    a.emit(f"v_readlane_b32 {sr(S_K1)}, {vr(x)}, 0")
    a.emit(f"v_readlane_b32 {sr(S_K2)}, {vr(x)}, 16")
    out_base(a, WS_KMAX, 16, 4, 0)
    a.emit(f"s_max_u32 {sr(S_K1)}, {sr(S_K1)}, {sr(S_K2)}")
    a.emit(f"v_mov_b32 {vr(t)}, {sr(S_K1)}")
    a.emit(f"v_mov_b32 {vr(t2)}, 0")
    a.emit("s_mov_b64 exec, 1")
    a.emit(f"global_store_dword {vr(t2)}, {vr(t)}, {sr(S_O,2)}")
    a.emit("s_mov_b64 exec, -1")

def epi_V(a):
    R = XT; P = E_ + 4
    n = E_; fill = E_ + 1
    a.emit(f"v_and_b32 {vr(n)}, 31, {vr(V_LANE)}")
    a.emit(f"v_cmp_eq_u32 vcc, 20, {vr(n)}")
    a.emit(f"v_mov_b32 {vr(E_+2)}, 0x3f803f80")
    for i in range(8): a.emit(f"v_cvt_pk_bf16_f32 {vr(P+i)}, {vr(R+2*i)}, {vr(R+2*i+1)}")
    a.emit(f"v_cndmask_b32 {vr(fill)}, 0, {vr(E_+2)}, vcc")
    a.emit(f"v_cmp_gt_u32 vcc, 20, {vr(n)}")
    a.emit("s_nop 1")
    for i in range(8): a.emit(f"v_cndmask_b32 {vr(P+i)}, {vr(fill)}, {vr(P+i)}, vcc")
    out_base(a, WS_KV + 2048, 4 * 4096, 4096, 0)
    a.emit(f"global_store_dwordx4 {vr(V_L16)}, {vr(P,4)}, {sr(S_O,2)}")
    a.emit(f"global_store_dwordx4 {vr(V_L16)}, {vr(P+4,4)}, {sr(S_O,2)} offset:1024")

QP = 96
PB = [0, 16]
EP = 32; EN = 42
PHI = [52, 62]
WF = [72, 78]
WPA = 84
FT = 136

def pack_pairs(a, pairs, dst):
    for n, p in enumerate(pairs):
        R = ACC + 20 * p; P = dst + 10 * n
        for i in range(4): a.emit(f"v_cvt_pk_bf16_f32 {vr(P+i)}, {vr(R+2*i)}, {vr(R+2*i+1)}")
        for i in range(4): a.emit(f"v_cvt_pk_bf16_f32 {vr(P+4+i)}, {vr(R+12+2*i)}, {vr(R+12+2*i+1)}")
        for i in range(2): a.emit(f"v_cvt_pk_bf16_f32 {vr(P+8+i)}, {vr(R+8+2*i)}, {vr(R+8+2*i+1)}")

def wphi_addr(a):
    l = V_LANE
    a.emit(f"v_bfe_u32 {vr(FT)}, {vr(l)}, 4, 1")
    a.emit(f"v_lshlrev_b32 {vr(FT)}, 2, {vr(FT)}")
    a.emit(f"v_and_b32 {vr(FT+1)}, 3, {vr(l)}")
    a.emit(f"v_add_u32 {vr(FT)}, {vr(FT)}, {vr(FT+1)}")
    a.emit(f"v_min_u32 {vr(FT)}, 4, {vr(FT)}")
    a.emit(f"v_lshlrev_b32 {vr(FT)}, 3, {vr(FT)}")
    a.emit(f"v_bfe_u32 {vr(FT+1)}, {vr(l)}, 2, 2")
    a.emit(f"v_mul_u32_u24 {vr(FT+1)}, 40, {vr(FT+1)}")
    a.emit(f"v_add_u32 {vr(FT)}, {vr(FT)}, {vr(FT+1)}")
    a.emit(f"v_add_u32 {vr(WPA+1)}, {EXTRA + 16*40}, {vr(FT)}")
    a.emit(f"v_lshrrev_b32 {vr(FT+1)}, 5, {vr(l)}")
    a.emit(f"v_mul_u32_u24 {vr(FT+1)}, 160, {vr(FT+1)}")
    a.emit(f"v_add_u32 {vr(FT)}, {vr(FT)}, {vr(FT+1)}")
    a.emit(f"v_add_u32 {vr(WPA)}, {EXTRA}, {vr(FT)}")

def wphi_read(a, hh):
    W = WF[hh & 1]
    a.emit(f"ds_read_b64_tr_b16 {vr(W,2)}, {vr(WPA)} offset:{hh*800}")
    a.emit(f"ds_read_b64_tr_b16 {vr(W+2,2)}, {vr(WPA)} offset:{hh*800+8*40}")
    a.emit(f"ds_read_b64_tr_b16 {vr(W+4,2)}, {vr(WPA+1)} offset:{hh*800}")

def phi_mfma(a, hh):
    W = WF[hh & 1]; P = PB[hh & 1]
    p = hh >> 1; Q = QP + 10 * p
    m = S_MLO if (hh & 1) == 0 else S_MHI
    a.emit("s_waitcnt lgkmcnt(0)")
    a.emit(f"v_cndmask_b32 {vr(W+4)}, 0, {vr(W+4)}, {sr(m,2)}")
    a.emit(f"v_cndmask_b32 {vr(W+5)}, 0, {vr(W+5)}, {sr(m,2)}")
    mfma(a, P, W, Q + 4 * (hh & 1), None)
    a.emit("s_nop 0")
    mfma8(a, P, W + 4, Q + 8, P)

def featmap(a, hh, out):
    P = PB[hh & 1]
    a.emit(f"v_cndmask_b32 {vr(P+8)}, {vr(P+8)}, {vr(P+10)}, {sr(S_MHI,2)}")
    a.emit(f"v_cndmask_b32 {vr(P+9)}, {vr(P+9)}, {vr(P+11)}, {sr(S_MHI,2)}")
    M = FT; N = FT + 1; T = FT + 2; T2 = FT + 3
    a.emit(f"v_max3_f32 {vr(M)}, {vr(P)}, {vr(P+1)}, {vr(P+2)}")
    a.emit(f"v_max3_f32 {vr(N)}, -{vr(P)}, -{vr(P+1)}, -{vr(P+2)}")
    for i in (3, 5, 7):
        a.emit(f"v_max3_f32 {vr(M)}, {vr(M)}, {vr(P+i)}, {vr(P+i+1)}")
        a.emit(f"v_max3_f32 {vr(N)}, {vr(N)}, -{vr(P+i)}, -{vr(P+i+1)}")
    a.emit(f"v_max_f32 {vr(M)}, {vr(M)}, {vr(P+9)}")
    a.emit(f"v_max_f32 {vr(N)}, {vr(N)}, -{vr(P+9)}")
    a.emit("s_nop 1")
    a.emit(f"v_permlane32_swap_b32 {vr(M)}, {vr(N)}")
    a.emit("s_nop 1")
    a.emit(f"v_max_f32 {vr(M)}, {vr(M)}, {vr(N)}")
    a.emit(f"v_mul_f32 {vr(M)}, {sr(S_K2)}, {vr(M)}")
    a.emit(f"v_mov_b32 {vr(N)}, {vr(M)}")
    a.emit("s_nop 1")
    a.emit(f"v_permlane32_swap_b32 {vr(M)}, {vr(N)}")
    a.emit("s_nop 1")
    for i in range(10):
        a.emit(f"v_fma_f32 {vr(EP+i)}, {vr(P+i)}, {sr(S_K1)}, {vr(M)}")
        a.emit(f"v_fma_f32 {vr(EN+i)}, {vr(P+i)}, {sr(S_K2)}, {vr(N)}")
    for i in range(10):
        a.emit(f"v_exp_f32 {vr(EP+i)}, {vr(EP+i)}")
        a.emit(f"v_exp_f32 {vr(EN+i)}, {vr(EN+i)}")
    SP = FT + 4; SN = FT + 6
    a.emit(f"v_pk_add_f32 {vr(SP,2)}, {vr(EP,2)}, {vr(EP+2,2)}")
    a.emit(f"v_pk_add_f32 {vr(SN,2)}, {vr(EN,2)}, {vr(EN+2,2)}")
    for i in (4, 6, 8):
        a.emit(f"v_pk_add_f32 {vr(SP,2)}, {vr(SP,2)}, {vr(EP+i,2)}")
        a.emit(f"v_pk_add_f32 {vr(SN,2)}, {vr(SN,2)}, {vr(EN+i,2)}")
    a.emit(f"v_add_f32 {vr(M)}, {vr(SP)}, {vr(SP+1)}")
    a.emit(f"v_add_f32 {vr(N)}, {vr(SN)}, {vr(SN+1)}")
    a.emit("s_nop 1")
    a.emit(f"v_permlane32_swap_b32 {vr(M)}, {vr(N)}")
    a.emit("s_nop 1")
    a.emit(f"v_add_f32 {vr(M)}, {vr(M)}, {vr(N)}")
    a.emit(f"v_rcp_f32 {vr(T)}, {vr(M)}")
    a.emit("s_nop 0")
    a.emit(f"v_mov_b32 {vr(T2)}, {vr(T)}")
    a.emit("s_nop 1")
    a.emit(f"v_permlane32_swap_b32 {vr(T)}, {vr(T2)}")
    a.emit("s_nop 1")
    for i in range(5):
        a.emit(f"v_pk_mul_f32 {vr(EP+2*i,2)}, {vr(EP+2*i,2)}, {vr(T,2)} op_sel_hi:[1,0]")
        a.emit(f"v_pk_mul_f32 {vr(EN+2*i,2)}, {vr(EN+2*i,2)}, {vr(T,2)} op_sel:[0,1] op_sel_hi:[1,1]")
    for i in range(5):
        a.emit(f"v_cvt_pk_bf16_f32 {vr(out+i)}, {vr(EP+2*i)}, {vr(EP+2*i+1)}")
        a.emit(f"v_cvt_pk_bf16_f32 {vr(out+5+i)}, {vr(EN+2*i)}, {vr(EN+2*i+1)}")

def consts_phi(a):
    a.emit(f"s_mov_b32 {sr(S_K1)}, {LOG2E}")
    a.emit(f"s_mov_b32 {sr(S_K2)}, {LOG2E | 0x80000000}")

def epi_Bq(a):
    pack_pairs(a, [0, 1, 2, 3], QP)
    consts_phi(a)
    wphi_addr(a)
    out_base(a, WS_PHIQ, 4 * 32 * 2560, 32 * 2560, 8 * 2560)
    a.emit(f"v_lshlrev_b32 {vr(V_T0)}, 3, {vr(V_LANE)}")
    wphi_read(a, 0)
    phi_mfma(a, 0)
    for hh in range(8):
        if hh < 7:
            wphi_read(a, hh + 1)
            phi_mfma(a, hh + 1)
            if hh == 0: a.emit("s_nop 3")
        else:
            a.emit("s_nop 7"); a.emit("s_nop 3")
        out = PHI[hh & 1]
        featmap(a, hh, out)
        a.emit(f"global_store_dwordx4 {vr(V_L16)}, {vr(out,4)}, {sr(S_O,2)}")
        a.emit(f"global_store_dwordx4 {vr(V_L16)}, {vr(out+4,4)}, {sr(S_O,2)} offset:1024")
        a.emit(f"global_store_dwordx2 {vr(V_T0)}, {vr(out+8,2)}, {sr(S_O,2)} offset:2048")
        if hh < 7:
            a.emit(f"s_add_u32 {sr(S_O)}, {sr(S_O)}, 2560")
            a.emit(f"s_addc_u32 {sr(S_O+1)}, {sr(S_O+1)}, 0")

PHI_L = 0
V_L = 40960
def epi_Bkv(a):
    pack_pairs(a, [0, 1, 2, 3], QP)
    consts_phi(a)
    wphi_addr(a)
    wphi_read(a, 0)
    a.emit("s_barrier")
    s_ = V_T0; pa = V_T1; va = V_T2
    a.emit(f"v_and_b32 {vr(s_)}, 31, {vr(V_LANE)}")
    a.emit(f"s_lshl_b32 {sr(S_T)}, {sr(S_W)}, 5")
    a.emit(f"v_add_u32 {vr(s_)}, {sr(S_T)}, {vr(s_)}")
    a.emit(f"v_lshrrev_b32 {vr(V_T3)}, 5, {vr(V_LANE)}")
    a.emit(f"v_mul_u32_u24 {vr(pa)}, 80, {vr(s_)}")
    a.emit(f"v_lshl_add_u32 {vr(pa)}, {vr(V_T3)}, 3, {vr(pa)}")
    a.emit(f"v_mul_u32_u24 {vr(va)}, 48, {vr(s_)}")
    a.emit(f"v_add_u32 {vr(va)}, {V_L}, {vr(va)}")
    a.emit(f"v_lshl_add_u32 {vr(FT+4)}, {vr(V_T3)}, 3, {vr(va)}")
    a.emit(f"v_mul_u32_u24 {vr(FT+5)}, 6144, {vr(V_T3)}")
    a.emit(f"v_add_u32 {vr(FT+5)}, {vr(FT+5)}, {vr(va)}")
    a.emit(f"v_mov_b32 {vr(FT+6)}, 0x3f80")
    a.emit(f"v_mov_b32 {vr(FT+7)}, 0")
    for pp in range(2):
        Q = QP + 10 * (2 + pp)
        for e in range(2):
            hd = 2 * pp + e
            a.emit(f"ds_write_b64 {vr(FT+4)}, {vr(Q+4*e,2)} offset:{hd*6144}")
            a.emit(f"ds_write_b64 {vr(FT+4)}, {vr(Q+4*e+2,2)} offset:{hd*6144+16}")
            a.emit(f"ds_write_b64 {vr(va)}, {vr(FT+6,2)} offset:{hd*6144+40}")
        a.emit(f"ds_write_b64 {vr(FT+5)}, {vr(Q+8,2)} offset:{2*pp*6144+32}")
    phi_mfma(a, 0)
    for hh in range(4):
        if hh < 3:
            wphi_read(a, hh + 1)
            phi_mfma(a, hh + 1)
            if hh == 0: a.emit("s_nop 3")
        else:
            a.emit("s_nop 7"); a.emit("s_nop 3")
        out = PHI[hh & 1]
        featmap(a, hh, out)
        for gm in range(5):
            col = 32 * (gm >> 2) + 8 * (gm & 3)
            a.emit(f"ds_write_b64 {vr(pa)}, {vr(out+2*gm,2)} offset:{PHI_L + hh*10240 + col*2}")
    a.emit("s_waitcnt lgkmcnt(0)")
    a.emit("s_barrier")
    l = V_LANE
    a.emit(f"v_lshrrev_b32 {vr(FT)}, 5, {vr(l)}")
    a.emit(f"v_lshlrev_b32 {vr(FT)}, 3, {vr(FT)}")
    a.emit(f"v_bfe_u32 {vr(FT+1)}, {vr(l)}, 2, 2")
    a.emit(f"v_add_u32 {vr(FT)}, {vr(FT)}, {vr(FT+1)}")
    a.emit(f"v_bfe_u32 {vr(FT+1)}, {vr(l)}, 4, 1")
    a.emit(f"v_lshlrev_b32 {vr(FT+1)}, 5, {vr(FT+1)}")
    a.emit(f"v_and_b32 {vr(FT+2)}, 3, {vr(l)}")
    a.emit(f"v_lshl_add_u32 {vr(FT+1)}, {vr(FT+2)}, 3, {vr(FT+1)}")
    a.emit(f"v_mul_u32_u24 {vr(FT+2)}, 80, {vr(FT)}")
    a.emit(f"v_add_u32 {vr(FT+2)}, {vr(FT+2)}, {vr(FT+1)}")
    a.emit(f"s_mul_i32 {sr(S_T)}, {sr(S_W)}, 10240")
    a.emit(f"v_add_u32 {vr(FT+2)}, {sr(S_T)}, {vr(FT+2)}")
    a.emit(f"v_mul_u32_u24 {vr(FT+3)}, 48, {vr(FT)}")
    a.emit(f"v_add_u32 {vr(FT+3)}, {vr(FT+3)}, {vr(FT+1)}")
    a.emit(f"s_mul_i32 {sr(S_T)}, {sr(S_W)}, 6144")
    a.emit(f"s_add_u32 {sr(S_T)}, {sr(S_T)}, {V_L}")
    a.emit(f"v_add_u32 {vr(FT+3)}, {sr(S_T)}, {vr(FT+3)}")
    F = 64
    def rd(ks):
        b = F + 12 * (ks & 1)
        a.emit(f"ds_read_b64_tr_b16 {vr(b,2)}, {vr(FT+2)} offset:{ks*16*80}")
        a.emit(f"ds_read_b64_tr_b16 {vr(b+2,2)}, {vr(FT+2)} offset:{ks*16*80+4*80}")
        a.emit(f"ds_read_b64_tr_b16 {vr(b+4,2)}, {vr(FT+2)} offset:{ks*16*80+64}")
        a.emit(f"ds_read_b64_tr_b16 {vr(b+6,2)}, {vr(FT+2)} offset:{ks*16*80+4*80+64}")
        a.emit(f"ds_read_b64_tr_b16 {vr(b+8,2)}, {vr(FT+3)} offset:{ks*16*48}")
        a.emit(f"ds_read_b64_tr_b16 {vr(b+10,2)}, {vr(FT+3)} offset:{ks*16*48+4*48}")
    rd(0)
    for ks in range(8):
        if ks < 7:
            rd(ks + 1)
            a.emit("s_waitcnt lgkmcnt(6)")
        else:
            a.emit("s_waitcnt lgkmcnt(0)")
        b = F + 12 * (ks & 1)
        mfma(a, 0, b, b + 8, None if ks == 0 else 0)
        mfma(a, 16, b + 4, b + 8, None if ks == 0 else 16)
    out_base(a, WS_KVP, 32 * 5120, 5120, 4 * 5120)
    a.emit("s_nop 7"); a.emit("s_nop 3")
    for i in range(5):
        if i == 4:
            a.emit(f"s_add_u32 {sr(S_O)}, {sr(S_O)}, 4096")
            a.emit(f"s_addc_u32 {sr(S_O+1)}, {sr(S_O+1)}, 0")
        a.emit(f"global_store_dwordx4 {vr(V_L16)}, {vr(4*i,4)}, {sr(S_O,2)} offset:{(i%4)*1024}")

def gen_proj(name="proj_kernel", prof=False):
    a = Asm()
    a(f".p2align 8\n.globl {name}\n.type {name},@function")
    a.label(name)
    a.emit("s_cmp_ge_u32 s2, 256")
    a.emit(f"s_cbranch_scc1 {name}_end")
    stamp(a, 0, prof)
    a.emit(f"s_load_dwordx2 {sr(S_WS,2)}, s[0:1], 88")
    a.emit("s_load_dwordx4 s[44:47], s[0:1], 0")
    a.emit("s_load_dwordx4 s[48:51], s[0:1], 16")
    a.emit("s_load_dwordx4 s[52:55], s[0:1], 40")
    a.emit("s_load_dwordx2 s[56:57], s[0:1], 56")
    a.emit(f"v_lshrrev_b32 {vr(V_T0)}, 6, v0")
    a.emit(f"v_and_b32 {vr(V_LANE)}, 63, v0")
    a.emit(f"v_readfirstlane_b32 {sr(S_W)}, {vr(V_T0)}")
    a.emit(f"v_lshlrev_b32 {vr(V_L16)}, 4, {vr(V_LANE)}")
    ids(a)
    a.emit(f"s_mov_b32 {sr(S_MLO)}, -1"); a.emit(f"s_mov_b32 {sr(S_MLO+1)}, 0")
    a.emit(f"s_mov_b32 {sr(S_MHI)}, 0"); a.emit(f"s_mov_b32 {sr(S_MHI+1)}, -1")
    a.emit(f"s_cmp_ge_u32 {sr(S_W)}, 4")
    a.emit(f"s_cbranch_scc1 {name}_loader")
    l = V_LANE
    a.emit(f"v_and_b32 {vr(V_T0)}, 31, {vr(l)}")
    a.emit(f"v_bfe_u32 {vr(V_T1)}, {vr(l)}, 1, 3")
    a.emit(f"v_lshrrev_b32 {vr(V_T2)}, 5, {vr(l)}")
    a.emit(f"v_lshlrev_b32 {vr(V_T0)}, 7, {vr(V_T0)}")
    a.emit(f"s_lshl_b32 {sr(S_T)}, {sr(S_W)}, 12")
    a.emit(f"v_add_u32 {vr(V_T0)}, {sr(S_T)}, {vr(V_T0)}")
    for s in range(4):
        a.emit(f"v_add_u32 {vr(V_T3)}, {2*s}, {vr(V_T2)}")
        a.emit(f"v_xor_b32 {vr(V_T3)}, {vr(V_T3)}, {vr(V_T1)}")
        a.emit(f"v_lshl_add_u32 {vr(XA+s)}, {vr(V_T3)}, 4, {vr(V_T0)}")
    a.emit(f"v_lshrrev_b32 {vr(V_T0)}, 5, {vr(l)}")
    a.emit(f"v_lshlrev_b32 {vr(V_T0)}, 3, {vr(V_T0)}")
    a.emit(f"v_bfe_u32 {vr(V_T1)}, {vr(l)}, 2, 2")
    a.emit(f"v_add_u32 {vr(V_T0)}, {vr(V_T0)}, {vr(V_T1)}")
    a.emit(f"v_mul_u32_u24 {vr(E_)}, 320, {vr(V_T0)}")
    a.emit(f"v_add_u32 {vr(E_)}, {XS}, {vr(E_)}")
    a.emit(f"v_mul_u32_u24 {vr(E_+1)}, 40, {vr(V_T0)}")
    a.emit(f"v_add_u32 {vr(E_+1)}, {EXTRA}, {vr(E_+1)}")
    a.emit(f"v_bfe_u32 {vr(V_T1)}, {vr(l)}, 4, 1")
    a.emit(f"v_lshlrev_b32 {vr(V_T1)}, 1, {vr(V_T1)}")
    a.emit(f"v_bfe_u32 {vr(V_T2)}, {vr(l)}, 1, 1")
    a.emit(f"v_add_u32 {vr(V_T1)}, {vr(V_T1)}, {vr(V_T2)}")
    a.emit(f"v_and_b32 {vr(V_T2)}, 1, {vr(l)}")
    a.emit(f"v_lshl_add_u32 {vr(V_T3)}, {vr(V_T1)}, 1, {vr(V_T2)}")
    a.emit(f"v_min_u32 {vr(V_T3)}, 4, {vr(V_T3)}")
    a.emit(f"v_lshl_add_u32 {vr(WA+5)}, {vr(V_T3)}, 3, {vr(E_+1)}")
    for t in range(5):
        rho = E_ + 2; p = E_ + 3; u = E_ + 4; G = E_ + 5; x = E_ + 6
        a.emit(f"v_add_u32 {vr(rho)}, {4*t}, {vr(V_T1)}")
        a.emit(f"v_mul_u32_u24 {vr(p)}, 13, {vr(rho)}")
        a.emit(f"v_lshrrev_b32 {vr(p)}, 6, {vr(p)}")
        a.emit(f"v_mul_u32_u24 {vr(u)}, 5, {vr(p)}")
        a.emit(f"v_sub_u32 {vr(u)}, {vr(rho)}, {vr(u)}")
        a.emit(f"v_lshl_add_u32 {vr(G)}, {vr(u)}, 1, {vr(V_T2)}")
        a.emit(f"v_cmp_lt_u32 vcc, 2, {vr(u)}")
        a.emit(f"v_lshlrev_b32 {vr(x)}, 2, {vr(V_T2)}")
        a.emit(f"v_subrev_u32 {vr(rho)}, 1, {vr(G)}")
        a.emit(f"v_cndmask_b32 {vr(G)}, {vr(G)}, {vr(rho)}, vcc")
        a.emit(f"v_cmp_eq_u32 vcc, 2, {vr(u)}")
        a.emit(f"v_add_u32 {vr(x)}, {vr(x)}, {vr(G)}")
        a.emit(f"v_mul_u32_u24 {vr(p)}, 10, {vr(p)}")
        a.emit(f"v_cndmask_b32 {vr(G)}, {vr(G)}, {vr(x)}, vcc")
        a.emit(f"v_add_u32 {vr(G)}, {vr(G)}, {vr(p)}")
        a.emit(f"v_lshl_add_u32 {vr(WA+t)}, {vr(G)}, 3, {vr(E_)}")
    for i in range(4): a.emit(f"v_mov_b32 {vr(BFR+i)}, 0")
    a.emit("s_nop 1")
    for t in range(6): mfma(a, ACC + 16 * t, BFR, BFR, None)
    a.emit("s_waitcnt lgkmcnt(0)")
    a.emit(f"s_cmp_eq_u32 {sr(S_ROLE)}, 1")
    a.emit(f"s_cbranch_scc1 {name}_mainK")
    a.emit(f"s_cmp_eq_u32 {sr(S_ROLE)}, 2")
    a.emit(f"s_cbranch_scc1 {name}_mainV")
    mainloop(a, "P", None, prof)
    a.emit(f"s_cmp_eq_u32 {sr(S_ROLE)}, 3")
    a.emit(f"s_cbranch_scc1 {name}_epiBq")
    a.emit(f"s_cmp_eq_u32 {sr(S_ROLE)}, 4")
    a.emit(f"s_cbranch_scc1 {name}_epiBkv")
    a.label(f"{name}_epiAQ")
    epi_AQ(a)
    a.emit("s_barrier"); a.emit("s_barrier")
    a.emit(f"s_branch {name}_fin")
    a.label(f"{name}_mainK")
    mainloop(a, "K", 'K', prof)
    epi_K(a)
    a.emit(f"s_branch {name}_epiAQ")
    a.label(f"{name}_mainV")
    mainloop(a, "V", 'V', prof)
    epi_V(a)
    a.emit(f"s_branch {name}_epiAQ")
    a.label(f"{name}_epiBq")
    epi_Bq(a)
    a.emit("s_barrier"); a.emit("s_barrier")
    a.emit(f"s_branch {name}_fin")
    a.label(f"{name}_epiBkv")
    epi_Bkv(a)
    a.label(f"{name}_fin")
    stamp(a, 3, prof)
    stamp_store(a, prof, S_WS, S_W, V_T0, V_T1, 8, WS_PROF)
    a.emit("s_endpgm")
    a.label(f"{name}_loader")
    a.emit(f"s_sub_u32 {sr(S_W)}, {sr(S_W)}, 4")
    for n in range(4):
        a.emit(f"v_lshrrev_b32 {vr(V_T0)}, 3, {vr(l)}")
        a.emit(f"v_add_u32 {vr(V_T0)}, {8*n}, {vr(V_T0)}")
        a.emit(f"v_bfe_u32 {vr(V_T1)}, {vr(V_T0)}, 1, 3")
        a.emit(f"v_and_b32 {vr(V_T2)}, 7, {vr(l)}")
        a.emit(f"v_xor_b32 {vr(V_T1)}, {vr(V_T1)}, {vr(V_T2)}")
        a.emit(f"v_mul_u32_u24 {vr(V_T0)}, 1280, {vr(V_T0)}")
        a.emit(f"v_lshl_add_u32 {vr(V_LO+n)}, {vr(V_T1)}, 4, {vr(V_T0)}")
    a.emit("s_waitcnt lgkmcnt(0)")
    a.emit(f"s_cmp_lt_u32 {sr(S_ROLE)}, 3")
    a.emit(f"s_cselect_b32 {sr(S_X)}, s44, s52")
    a.emit(f"s_cselect_b32 {sr(S_X+1)}, s45, s53")
    a.emit(f"s_cselect_b32 {sr(S_WB)}, s46, s54")
    a.emit(f"s_cselect_b32 {sr(S_WB+1)}, s47, s55")
    a.emit(f"s_mov_b32 {sr(S_WADV)}, 3840")
    a.emit(f"s_cselect_b32 {sr(S_WADV)}, 1280, {sr(S_WADV)}")
    a.emit(f"s_lshl_b32 {sr(S_T)}, {sr(S_RB)}, 2")
    a.emit(f"s_add_u32 {sr(S_T)}, {sr(S_T)}, {sr(S_W)}")
    a.emit(f"s_mul_i32 {sr(S_T)}, {sr(S_T)}, {32*1280}")
    a.emit(f"s_add_u32 {sr(S_X)}, {sr(S_X)}, {sr(S_T)}")
    a.emit(f"s_addc_u32 {sr(S_X+1)}, {sr(S_X+1)}, 0")
    a.emit(f"s_cmp_eq_u32 {sr(S_ROLE)}, 4")
    a.emit(f"s_cselect_b32 {sr(S_T2)}, 1120, 0")
    for n in range(5):
        a.emit(f"v_add_u32 {vr(V_T0)}, {64*n}, {vr(l)}")
        div20(a, V_T1, V_T2, V_T0)
        a.emit(f"v_mul_lo_u32 {vr(V_T1)}, {vr(V_T1)}, {sr(S_WADV)}")
        a.emit(f"v_lshl_add_u32 {vr(V_T1)}, {vr(V_T2)}, 4, {vr(V_T1)}")
        a.emit(f"v_cmp_le_u32 vcc, 10, {vr(V_T2)}")
        a.emit(f"v_mov_b32 {vr(V_T3)}, {sr(S_T2)}")
        a.emit("s_nop 0")
        a.emit(f"v_cndmask_b32 {vr(V_T3)}, 0, {vr(V_T3)}, vcc")
        a.emit(f"v_add_u32 {vr(V_LO+4+n)}, {vr(V_T1)}, {vr(V_T3)}")
    a.emit(f"s_mul_i32 {sr(S_T)}, {sr(S_W)}, {sr(S_WADV)}")
    a.emit(f"s_lshl_b32 {sr(S_T)}, {sr(S_T)}, 4")
    a.emit(f"s_mul_i32 {sr(S_T2)}, {sr(S_G)}, 320")
    a.emit(f"s_mul_i32 {sr(S_K1)}, {sr(S_G)}, 160")
    a.emit(f"s_add_u32 {sr(S_K1)}, {sr(S_K1)}, 1280")
    a.emit(f"s_cmp_eq_u32 {sr(S_ROLE)}, 4")
    a.emit(f"s_cselect_b32 {sr(S_T2)}, {sr(S_K1)}, {sr(S_T2)}")
    a.emit(f"s_add_u32 {sr(S_T)}, {sr(S_T)}, {sr(S_T2)}")
    a.emit(f"s_add_u32 {sr(S_WB)}, {sr(S_WB)}, {sr(S_T)}")
    a.emit(f"s_addc_u32 {sr(S_WB+1)}, {sr(S_WB+1)}, 0")
    a.emit(f"s_lshl_b32 {sr(S_WADV)}, {sr(S_WADV)}, 6")
    a.emit(f"s_lshl_b32 {sr(S_M0X)}, {sr(S_W)}, 12")
    a.emit(f"s_mul_i32 {sr(S_M0W)}, {sr(S_W)}, 5120")
    a.emit(f"s_add_u32 {sr(S_M0W)}, {sr(S_M0W)}, {XS}")
    a.emit(f"s_min_u32 {sr(S_T)}, {sr(S_W)}, 2")
    a.emit(f"s_lshl_b32 {sr(S_M0E)}, {sr(S_T)}, 10")
    a.emit(f"v_add_u32 {vr(V_LO+9)}, {sr(S_M0E)}, {vr(V_L16)}")
    a.emit(f"s_add_u32 {sr(S_M0E)}, {sr(S_M0E)}, {EXTRA}")
    a.emit(f"s_cmp_lt_u32 {sr(S_W)}, 2")
    a.emit(f"s_cselect_b32 {sr(S_EXM+1)}, -1, 0")
    a.emit(f"s_mov_b32 {sr(S_EXM)}, -1")
    a.emit(f"s_cmp_eq_u32 {sr(S_ROLE)}, 1")
    a.emit(f"s_cselect_b32 {sr(S_EX)}, s48, s50")
    a.emit(f"s_cselect_b32 {sr(S_EX+1)}, s49, s51")
    def chunk(c, extra):
        buf = c % 4
        if c > 0:
            a.emit(f"s_add_u32 {sr(S_X)}, {sr(S_X)}, 128")
            a.emit(f"s_addc_u32 {sr(S_X+1)}, {sr(S_X+1)}, 0")
            a.emit(f"s_add_u32 {sr(S_WB)}, {sr(S_WB)}, {sr(S_WADV)}")
            a.emit(f"s_addc_u32 {sr(S_WB+1)}, {sr(S_WB+1)}, 0")
        for n in range(5):
            a.emit(f"s_add_u32 m0, {sr(S_M0W)}, {buf*STAGE + n*1024}")
            a.emit("s_nop 0")
            a.emit(f"global_load_lds_dwordx4 {vr(V_LO+4+n)}, {sr(S_WB,2)}")
        for n in range(4):
            a.emit(f"s_add_u32 m0, {sr(S_M0X)}, {buf*STAGE + n*1024}")
            a.emit("s_nop 0")
            a.emit(f"global_load_lds_dwordx4 {vr(V_LO+n)}, {sr(S_X,2)}")
        if extra:
            if c > 0:
                a.emit(f"s_add_u32 {sr(S_EX)}, {sr(S_EX)}, 2560")
                a.emit(f"s_addc_u32 {sr(S_EX+1)}, {sr(S_EX+1)}, 0")
            a.emit(f"s_add_u32 m0, {sr(S_M0E)}, {buf*2560}")
            a.emit(f"s_mov_b64 exec, {sr(S_EXM,2)}")
            a.emit(f"global_load_lds_dwordx4 {vr(V_LO+9)}, {sr(S_EX,2)}")
            a.emit("s_mov_b64 exec, -1")
    def loader(extra):
        n = 10 if extra else 9
        chunk(0, extra); chunk(1, extra)
        for c in range(10):
            a.emit(f"s_waitcnt vmcnt({n if c < 9 else 0})")
            a.emit("s_barrier")
            if c + 2 < 10: chunk(c + 2, extra)
        a.emit("s_barrier")
        a.emit("s_barrier"); a.emit("s_barrier")
        a.emit("s_endpgm")
    a.emit(f"s_cmp_eq_u32 {sr(S_ROLE)}, 1")
    a.emit(f"s_cbranch_scc1 {name}_ldx")
    a.emit(f"s_cmp_eq_u32 {sr(S_ROLE)}, 2")
    a.emit(f"s_cbranch_scc1 {name}_ldx")
    a.emit(f"s_cmp_lt_u32 {sr(S_ROLE)}, 3")
    a.emit(f"s_cbranch_scc1 {name}_ldp")
    a.emit(f"s_cmp_eq_u32 {sr(S_ROLE)}, 3")
    a.emit(f"s_mov_b32 {sr(S_T)}, 3200")
    a.emit(f"s_cselect_b32 {sr(S_T)}, 6400, {sr(S_T)}")
    a.emit(f"s_mul_i32 {sr(S_T)}, {sr(S_T)}, {sr(S_G)}")
    for rep in range(2):
        a.emit(f"s_lshl_b32 {sr(S_T2)}, {sr(S_W)}, 10")
        a.emit(f"s_add_u32 {sr(S_T2)}, {sr(S_T2)}, {rep*4096}")
        a.emit(f"s_add_u32 m0, {sr(S_T2)}, {EXTRA}")
        a.emit(f"s_add_u32 {sr(S_T2)}, {sr(S_T2)}, {sr(S_T)}")
        a.emit(f"v_add_u32 {vr(V_T0)}, {sr(S_T2)}, {vr(V_L16)}")
        a.emit(f"v_min_u32 {vr(V_T0)}, 25584, {vr(V_T0)}")
        a.emit(f"global_load_lds_dwordx4 {vr(V_T0)}, s[56:57]")
    a.label(f"{name}_ldp")
    loader(False)
    a.label(f"{name}_ldx")
    loader(True)
    a.label(f"{name}_end")
    a.emit("s_endpgm")
    desc = f"""
.amdhsa_kernel {name}
  .amdhsa_next_free_vgpr {NV}
  .amdhsa_next_free_sgpr 100
  .amdhsa_accum_offset {NV}
  .amdhsa_group_segment_fixed_size 0
  .amdhsa_kernarg_size 96
  .amdhsa_user_sgpr_count 2
  .amdhsa_user_sgpr_kernarg_segment_ptr 1
  .amdhsa_system_sgpr_workgroup_id_x 1
.end_amdhsa_kernel
"""
    launch = f"; @launch kernel={name} grid=(256,1,1) block=(512,1,1) lds={LDS_BYTES}"
    return a.text(), desc, launch
```

```python
import sys
from asm import check_hazards
import attn, oproj
HDR = open("concat_heads__grouped_kv_mqa__linear_kernel_hedgehog__prompt.s.ref").read().split("; Override")[0]
def build(parts, out):
    txt = HDR
    for t, d, l in parts: txt += l + "\n"
    txt += '.amdgcn_target "amdgcn-amd-amdhsa--gfx950"\n.text\n'
    for t, d, l in parts:
        check_hazards(t)
        txt += t
    txt += '.section .rodata,"a"\n'
    for t, d, l in parts: txt += ".p2align 6\n" + d
    open(out, "w").write(txt)
if __name__ == "__main__":
    kw = {}
    which = sys.argv[2].split(",")
    for x in sys.argv[3:]:
        if "=" in x:
            k, v = x.split("="); kw[k] = int(v)
    parts = []
    import inspect
    for w in which:
        f = {"attn": attn.gen_attn, "oproj": oproj.gen_oproj}.get(w)
        if f is None:
            import proj; f = proj.gen_proj
        sig = inspect.signature(f).parameters
        parts.append(f(**{k: v for k, v in kw.items() if k in sig}))
    build(parts, sys.argv[1])
```

```python
import re

class Asm:
    def __init__(self):
        self.lines = []
    def __call__(self, s=""):
        for l in s.split("\n"):
            self.lines.append(l)
    def emit(self, s):
        self.lines.append("    " + s)
    def label(self, s):
        self.lines.append(s + ":")
    def comment(self, s):
        self.lines.append("    ; " + s)
    def text(self):
        return "\n".join(self.lines) + "\n"

def vr(base, n=1):
    return f"v{base}" if n == 1 else f"v[{base}:{base+n-1}]"
def sr(base, n=1):
    return f"s{base}" if n == 1 else f"s[{base}:{base+n-1}]"

_reg_re = re.compile(r"\b([vsa])(\d+)\b|\b([vsa])\[(\d+):(\d+)\]")
def regs_of(op):
    out = []
    for m in _reg_re.finditer(op):
        if m.group(1):
            out.append((m.group(1), int(m.group(2))))
        else:
            for i in range(int(m.group(4)), int(m.group(5)) + 1):
                out.append((m.group(3), i))
    if "vcc" in op: out.append(("s", "vcc"))
    if re.search(r"\bexec\b", op): out.append(("s", "exec"))
    if re.search(r"\bm0\b", op): out.append(("s", "m0"))
    return out

TRANS = ("v_exp_f32", "v_log_f32", "v_rcp_f32", "v_rsq_f32", "v_sqrt_f32", "v_sin_f32", "v_cos_f32", "v_exp_f16", "v_rcp_iflag_f32")

def parse(line):
    l = line.split(";")[0].strip()
    if not l or l.endswith(":") or l.startswith("."):
        return None
    parts = l.split(None, 1)
    op = parts[0]
    args = [a.strip() for a in parts[1].split(",")] if len(parts) > 1 else []
    return op, args, l

def classify(op, args):
    d = dict(op=op, kind="other", dst=[], src=[], states=1)
    base = op.replace("_e32", "").replace("_e64", "").replace("_dpp", "").replace("_sdwa", "")
    if op == "s_nop":
        d["states"] = int(args[0], 0) + 1
        d["kind"] = "nop"
        return d
    if op.startswith("v_mfma"):
        d["kind"] = "mfma"
        d["dst"] = regs_of(args[0]); d["A"] = regs_of(args[1]); d["B"] = regs_of(args[2]); d["C"] = regs_of(args[3])
        d["src"] = d["A"] + d["B"] + d["C"]
        d["passes"] = 8 if "32x32" in op else 4
        return d
    if op.startswith("v_"):
        d["kind"] = "valu"
        if base.startswith("v_cmp"):
            d["dst"] = regs_of(args[0]); d["src"] = sum((regs_of(a) for a in args[1:]), [])
            if base.startswith("v_cmpx"): d["dst"].append(("s", "exec"))
        elif base.startswith("v_permlane32_swap") or base.startswith("v_permlane16_swap"):
            d["dst"] = regs_of(args[0]) + regs_of(args[1]); d["src"] = list(d["dst"]); d["kind"] = "permlane"
        elif base in ("v_readfirstlane_b32", "v_readlane_b32"):
            d["dst"] = regs_of(args[0]); d["src"] = sum((regs_of(a) for a in args[1:]), []); d["kind"] = "readlane"
        else:
            d["dst"] = regs_of(args[0])
            rest = args[1:]
            if base in ("v_add_co_u32", "v_sub_co_u32", "v_addc_co_u32", "v_subb_co_u32", "v_div_scale_f32"):
                d["dst"] += regs_of(args[1]); rest = args[2:]
            d["src"] = sum((regs_of(a) for a in rest), [])
            if base in ("v_fmac_f32", "v_pk_fmac_f16", "v_writelane_b32") or "row_" in " ".join(args) or "UNUSED_PRESERVE" in " ".join(args):
                d["src"] += regs_of(args[0])
            if base == "v_cndmask_b32" and len(args) == 3: d["src"].append(("s", "vcc"))
            if "dpp" in op or "row_" in " ".join(args) or "quad_perm" in " ".join(args): d["dpp"] = True
        if base in TRANS: d["trans"] = True
        return d
    if op.startswith("ds_") or op.startswith("global_") or op.startswith("buffer_") or op.startswith("flat_"):
        d["kind"] = "mem"
        allr = [regs_of(a.split(" ")[0]) for a in args]
        isload = ("load" in op or "read" in op or "bpermute" in op or "swizzle" in op or "permute" in op) and "lds" not in op.split("_")[2:3] and not (op.startswith("buffer_load") and args and args[-1].endswith("lds"))
        if op.startswith("global_load_lds"): isload = False
        if "atomic" in op and "sc0" in " ".join(args): isload = True
        if isload:
            d["dst"] = allr[0]; d["src"] = sum(allr[1:], [])
        else:
            d["src"] = sum(allr, [])
        d["isstore"] = ("store" in op or "write" in op)
        d["wide"] = ("x4" in op or "x3" in op or "b128" in op or "b96" in op)
        d["lds_dma"] = op.startswith("global_load_lds") or (op.startswith("buffer_load") and " ".join(args).rstrip().endswith("lds"))
        return d
    if op.startswith("s_"):
        d["kind"] = "salu"
        if op.startswith("s_cmp") or op.startswith("s_cbranch") or op.startswith("s_branch") or op in ("s_waitcnt", "s_barrier", "s_endpgm", "s_setprio", "s_sleep"):
            d["src"] = sum((regs_of(a) for a in args), [])
        else:
            d["dst"] = regs_of(args[0]) if args else []
            d["src"] = sum((regs_of(a) for a in args[1:]), [])
            if "saveexec" in op: d["dst"].append(("s", "exec"))
        return d
    return d

def _deficit(ins, j):
    c = ins[j]
    sset = set(c["src"]); dset = set(c["dst"])
    best = (0, None)
    st = 0
    W = 24
    def need(i, n, why):
        nonlocal best
        if n - st > best[0]: best = (n - st, f"line {c['line']}: '{c['text']}' needs {n} after line {ins[i]['line']} '{ins[i]['text']}' (has {st}): {why}")
    for i in range(j - 1, max(-1, j - W), -1):
        p = ins[i]
        if p["op"] == "s_endpgm": break
        pd = set(p["dst"])
        pv = {r for r in pd if r[0] in "va"}; ps = {r for r in pd if r[0] == "s"}
        if p["kind"] in ("valu", "permlane", "readlane"):
            if c["kind"] == "mfma" and pv & sset: need(i, 2, "VALU write -> MFMA read")
            if c["kind"] == "mfma" and ("s", "exec") in pd: need(i, 4, "VALU exec write -> MFMA")
            if c["kind"] == "permlane" and pv & sset: need(i, 2, "VALU write -> permlane")
            if c["kind"] == "readlane" and pv & sset: need(i, 1, "VALU write -> readlane")
            if c.get("dpp") and pv & sset: need(i, 2, "VALU write -> DPP read")
            if c.get("dpp") and ("s", "exec") in pd: need(i, 5, "VALU exec write -> DPP")
            if p.get("trans") and c["kind"] in ("valu", "permlane", "readlane", "mfma") and not c.get("trans") and pv & sset: need(i, 1, "trans -> VALU")
            if ps & sset:
                if c["kind"] == "mem": need(i, 5, "VALU sgpr write -> VMEM read")
                elif c["kind"] == "valu": need(i, 2, "VALU sgpr write -> VALU read")
                elif c["kind"] == "readlane": need(i, 4, "VALU sgpr write -> lane select")
                elif c["kind"] == "permlane" and ("s", "exec") in pd: need(i, 4, "cmpx->permlane")
            if ("s", "exec") in pd and c["kind"] in ("readlane",): need(i, 4, "exec write -> readlane")
        if p["kind"] == "mfma":
            np_ = p["passes"]
            raw = {2: 5, 4: 8, 8: 12, 16: 20}[np_]
            if c["kind"] == "mfma":
                if pd & (set(c["A"]) | set(c["B"])): need(i, raw, "MFMA D -> MFMA A/B")
                if pd & set(c["C"]) and not (pd == set(c["C"]) and c["passes"] == np_): need(i, {4: 6, 8: 10}[np_], "MFMA D -> MFMA C overlap")
                if pd & set(c["dst"]) and not (pd & set(c["C"])): need(i, {4: 6, 8: 10}[np_], "MFMA D -> MFMA D WAW (conservative)")
            elif c["kind"] in ("valu", "permlane", "readlane", "mem"):
                if pd & (sset | dset): need(i, raw, "MFMA D -> VALU/mem read/write")
            if c["kind"] in ("valu", "permlane") and set(p["C"]) & dset: need(i, {4: 3, 8: 7}[np_], "MFMA reads C -> VALU write WAR")
        if p["kind"] == "mem" and p.get("isstore") and p.get("wide") and p["op"].startswith(("global", "buffer", "flat")):
            if c["kind"] in ("valu", "permlane", "mfma") and set(p["src"]) & dset: need(i, 2, "wide store data WAR")
        if p["kind"] == "salu" and ("s", "m0") in pd and c["kind"] == "mem" and c.get("lds_dma"): need(i, 1, "m0 write -> LDS DMA")
        st += p["states"]
    return best

def _parse_all(text):
    ins = []
    for n, line in enumerate(text.split("\n"), 1):
        p = parse(line)
        if p is None: continue
        c = classify(p[0], p[1]); c["line"] = n; c["text"] = p[2]
        ins.append(c)
    return ins

def check_hazards(text, verbose=True):
    ins = _parse_all(text)
    probs = []
    for j in range(len(ins)):
        d, why = _deficit(ins, j)
        if d > 0: probs.append(why)
    if verbose:
        for x in probs: print("HAZARD:", x)
    return probs

def fix_hazards(text):
    out_lines = []
    ins = []
    nfix = 0
    for n, line in enumerate(text.split("\n"), 1):
        p = parse(line)
        if p is None:
            out_lines.append(line); continue
        c = classify(p[0], p[1]); c["line"] = n; c["text"] = p[2]
        ins.append(c)
        d, why = _deficit(ins, len(ins) - 1)
        if d > 0:
            ins.pop()
            k = d
            while k > 0:
                m = min(k, 16)
                out_lines.append(f"    s_nop {m-1}")
                nop = classify("s_nop", [str(m - 1)]); nop["line"] = n; nop["text"] = "s_nop"
                ins.append(nop); k -= m
            ins.append(c); nfix += 1
        out_lines.append(line)
    return "\n".join(out_lines), nfix

def interleave(*streams):
    streams = [list(s) for s in streams]
    tot = max(len(s) for s in streams)
    out = []
    pos = [0] * len(streams)
    for step in range(1, tot + 1):
        for i, s in enumerate(streams):
            tgt = (step * len(s) + tot - 1) // tot
            while pos[i] < min(tgt, len(s)):
                out.append(s[pos[i]]); pos[i] += 1
    return out

def stamp(a, idx, prof):
    if not prof: return
    a.emit(f"s_memtime s[{64+4*idx}:{65+4*idx}]")
    a.emit(f"s_memrealtime s[{66+4*idx}:{67+4*idx}]")

def stamp_store(a, prof, s_ws, s_w, vt0, vt1, nst=8, ws_prof=0, nwaves_log=3):
    if not prof: return
    a.emit("s_waitcnt lgkmcnt(0)")
    a.emit(f"s_lshl_b32 s60, s2, {nwaves_log}")
    a.emit(f"s_add_u32 s60, s60, s{s_w}")
    a.emit("s_lshl_b32 s60, s60, 7")
    a.emit(f"s_add_u32 s60, s60, {ws_prof}")
    a.emit(f"s_add_u32 s62, s{s_ws}, s60")
    a.emit(f"s_addc_u32 s63, s{s_ws+1}, 0")
    a.emit(f"s_mov_b64 exec, -1")
    a.emit(f"v_mov_b32 v{vt0}, 0")
    for i in range(nst * 4):
        a.emit(f"v_mov_b32 v{vt1}, s{64+i}")
        a.emit(f"global_store_dword v{vt0}, v{vt1}, s[62:63] offset:{4*i}")
```

```python
from asm import *
from layout import *
import struct
def f2u(x): return struct.unpack("<I", struct.pack("<f", x))[0]
S_WS = 4
S_WG = 96
S_DBG = 98
V_LANE_G = 228; V_L16_G = 229
NV = 232
_uid = [0]
def uid():
    _uid[0] += 1; return _uid[0]

def mfma(a, d, A, B, C):
    c = "0" if C is None else vr(C, 16)
    a.emit(f"v_mfma_f32_32x32x16_bf16 {vr(d,16)}, {vr(A,4)}, {vr(B,4)}, {c}")
def mfma8(a, d, A, B, C):
    c = "0" if C is None else vr(C, 16)
    a.emit(f"v_mfma_f32_32x32x8_bf16 {vr(d,16)}, {vr(A,2)}, {vr(B,2)}, {c}")

def div20(a, dst_row, dst_seg, p):
    a.emit(f"v_mul_u32_u24 {vr(dst_row)}, 3277, {vr(p)}")
    a.emit(f"v_lshrrev_b32 {vr(dst_row)}, 16, {vr(dst_row)}")
    a.emit(f"v_mul_u32_u24 {vr(dst_seg)}, 20, {vr(dst_row)}")
    a.emit(f"v_sub_u32 {vr(dst_seg)}, {vr(p)}, {vr(dst_seg)}")

SPIN = 2000000
def init_counters(a, vt0, vt1):
    u = uid()
    a.emit(f"s_or_b32 s60, s2, {sr(S_WG)}")
    a.emit("s_cmp_eq_u32 s60, 0")
    a.emit(f"s_cbranch_scc0 G_noinit{u}")
    for i in range(4): a.emit(f"v_mov_b32 {vr(vt0+i)}, 0")
    a.emit(f"v_add_u32 {vr(vt1)}, {WS_CNT}, {vr(V_L16_G)}")
    for i in range(4): a.emit(f"global_store_dwordx4 {vr(vt1)}, {vr(vt0,4)}, {sr(S_WS,2)} offset:{i*1024} sc1")
    a.emit(f"v_add_u32 {vr(vt1)}, 4096, {vr(vt1)}")
    for i in range(4): a.emit(f"global_store_dwordx4 {vr(vt1)}, {vr(vt0,4)}, {sr(S_WS,2)} offset:{i*1024} sc1")
    a.emit("s_waitcnt vmcnt(0)")
    a.emit(f"v_mov_b32 {vr(vt1)}, 1")
    a.emit("s_mov_b64 exec, 1")
    a.emit(f"global_store_dword {vr(vt0)}, {vr(vt1)}, {sr(S_DBG,2)} sc1")
    a.emit("s_mov_b64 exec, -1")
    a.label(f"G_noinit{u}")

def init_check(a, vt0, vt1):
    u = uid()
    a.emit(f"s_cmp_eq_u32 {sr(S_WG)}, 0")
    a.emit(f"s_cbranch_scc0 G_nochk{u}")
    a.emit(f"v_mov_b32 {vr(vt0)}, 0")
    a.emit(f"s_mov_b32 s60, {SPIN}")
    a.label(f"G_chk{u}")
    a.emit(f"global_load_dword {vr(vt1)}, {vr(vt0)}, {sr(S_DBG,2)} sc1")
    a.emit("s_waitcnt vmcnt(0)")
    a.emit(f"v_readfirstlane_b32 s61, {vr(vt1)}")
    a.emit("s_sub_u32 s60, s60, 1")
    a.emit("s_cmp_eq_u32 s60, 0")
    a.emit(f"s_cbranch_scc1 G_nochk{u}")
    a.emit("s_cmp_eq_u32 s61, 0")
    a.emit(f"s_cbranch_scc1 G_chk{u}")
    a.label(f"G_nochk{u}")

def gbar_arrive(a, k, vt0, vt1):
    u = uid()
    a.emit("s_waitcnt vmcnt(0) lgkmcnt(0)")
    a.emit("s_barrier")
    a.emit(f"s_cmp_eq_u32 {sr(S_WG)}, 0")
    a.emit(f"s_cbranch_scc0 G_noarr{u}")
    a.emit("s_and_b32 s60, s2, 7")
    a.emit("s_lshl_b32 s60, s60, 7")
    a.emit(f"s_add_u32 s60, s60, {WS_CNT + k*1024}")
    a.emit(f"v_mov_b32 {vr(vt0)}, s60")
    a.emit(f"v_mov_b32 {vr(vt1)}, 1")
    a.emit("s_mov_b64 exec, 1")
    a.emit(f"global_atomic_add {vr(vt0)}, {vr(vt1)}, {sr(S_WS,2)} sc1")
    a.emit("s_mov_b64 exec, -1")
    a.label(f"G_noarr{u}")

def gbar_wait(a, k, vt0, vt1, sleep=1):
    u = uid()
    a.emit(f"s_cmp_eq_u32 {sr(S_WG)}, 0")
    a.emit(f"s_cbranch_scc0 G_nowait{u}")
    a.emit(f"v_and_b32 {vr(vt0)}, 7, {vr(V_LANE_G)}")
    a.emit(f"v_lshlrev_b32 {vr(vt0)}, 7, {vr(vt0)}")
    a.emit(f"v_add_u32 {vr(vt0)}, {WS_CNT + k*1024}, {vr(vt0)}")
    a.emit(f"s_mov_b32 s60, {SPIN}")
    a.label(f"G_poll{u}")
    a.emit(f"global_load_dword {vr(vt1)}, {vr(vt0)}, {sr(S_WS,2)} sc1")
    a.emit("s_waitcnt vmcnt(0)")
    a.emit(f"v_cmp_le_u32 vcc, 32, {vr(vt1)}")
    a.emit("s_sub_u32 s60, s60, 1")
    a.emit("s_cmp_eq_u32 s60, 0")
    a.emit(f"s_cbranch_scc1 G_nowait{u}")
    a.emit("s_cmp_eq_u64 vcc, -1")
    a.emit(f"s_cbranch_scc1 G_nowait{u}")
    if sleep: a.emit(f"s_sleep {sleep}")
    a.emit(f"s_branch G_poll{u}")
    a.label(f"G_nowait{u}")
    a.emit("s_barrier")
```

```python
from asm import *
from layout import *
from common import *

ACC = 0; XT = 80; AF = 96; BFR = 144; WA = 152; XA = 158; E_ = 162
M_ = 200
V_LANE = M_; V_L16 = M_ + 1
V_T0 = M_ + 2; V_T1 = M_ + 3; V_T2 = M_ + 4; V_T3 = M_ + 5
V_LO = M_ + 6
S_W = 10; S_T = 14; S_T2 = 15
S_ROLE = 11; S_RB = 12; S_G = 13
S_X = 16; S_WB = 18; S_EX = 20
S_CNT = 22; S_M0X = 23; S_M0W = 24; S_M0E = 25; S_DELTA = 26; S_BUF = 27
S_WADV = 28; S_NC = 29
S_MLO = 30; S_MHI = 32
S_O = 34
S_EXM = 36
S_K1 = 38; S_K2 = 39; S_K3 = 40; S_K4 = 41; S_ROT = 42; S_KC = 43
XS = 16384; WS_ = 20480
STAGE = XS + WS_
EXTRA = 4 * STAGE
LDS_P1 = EXTRA + 10240
LOG2E = 0x3fb8aa3b
ST = " sc1"

def ids(a):
    a.emit(f"s_and_b32 {sr(S_T)}, s2, 7")
    a.emit(f"s_lshr_b32 {sr(S_T2)}, s2, 3")
    a.emit(f"s_lshr_b32 {sr(S_RB)}, {sr(S_T2)}, 2")
    a.emit(f"s_and_b32 {sr(S_G)}, {sr(S_T2)}, 3")
    a.emit(f"s_mul_i32 {sr(S_ROT)}, {sr(S_G)}, 3")
    a.emit(f"s_add_u32 {sr(S_ROT)}, {sr(S_ROT)}, {sr(S_RB)}")
    a.emit(f"s_cmp_ge_u32 {sr(S_ROT)}, 10")
    a.emit(f"s_cselect_b32 {sr(S_T2)}, 10, 0")
    a.emit(f"s_sub_u32 {sr(S_ROT)}, {sr(S_ROT)}, {sr(S_T2)}")
    a.emit(f"s_cmp_ge_u32 {sr(S_T)}, 2")
    a.emit("s_cbranch_scc1 P1_idsB")
    a.emit(f"s_lshl_b32 {sr(S_T)}, {sr(S_T)}, 3")
    a.emit(f"s_add_u32 {sr(S_RB)}, {sr(S_RB)}, {sr(S_T)}")
    a.emit(f"s_add_u32 {sr(S_ROLE)}, {sr(S_G)}, 1")
    a.emit(f"s_cmp_ge_u32 {sr(S_G)}, 2")
    a.emit(f"s_cselect_b32 {sr(S_ROLE)}, 0, {sr(S_ROLE)}")
    a.emit("s_branch P1_idsE")
    a.label("P1_idsB")
    a.emit(f"s_sub_u32 {sr(S_T)}, {sr(S_T)}, 2")
    a.emit(f"s_and_b32 {sr(S_T2)}, {sr(S_T)}, 1")
    a.emit(f"s_lshl_b32 {sr(S_T2)}, {sr(S_T2)}, 3")
    a.emit(f"s_add_u32 {sr(S_RB)}, {sr(S_RB)}, {sr(S_T2)}")
    a.emit(f"s_lshr_b32 {sr(S_T)}, {sr(S_T)}, 1")
    a.emit(f"s_cmp_eq_u32 {sr(S_T)}, 0")
    a.emit(f"s_cselect_b32 {sr(S_ROLE)}, 3, 4")
    a.emit("s_cbranch_scc1 P1_idsE")
    a.emit(f"s_sub_u32 {sr(S_T)}, {sr(S_T)}, 1")
    a.emit(f"s_lshl_b32 {sr(S_T)}, {sr(S_T)}, 2")
    a.emit(f"s_add_u32 {sr(S_G)}, {sr(S_G)}, {sr(S_T)}")
    a.label("P1_idsE")

def kstep(a, s, extra):
    cur = s & 1; nxt = cur ^ 1
    ns = (s + 1) & 3
    nt = 6 if extra else 5
    for t in range(nt):
        if t < 5:
            mfma(a, ACC + 16 * t, AF + 24 * cur + 4 * t, BFR + 4 * cur, ACC + 16 * t)
        elif extra == 'K':
            mfma(a, XT, AF + 24 * cur + 20, BFR + 4 * cur, XT)
        else:
            mfma(a, XT, BFR + 4 * cur, AF + 24 * cur + 20, XT)
        if t < nt - 1:
            n_after = 2 * (nt - 2 - t) + (0 if t == 0 else 2 * t + 1)
        else:
            n_after = 2 * (nt - 2)
        a.emit(f"s_waitcnt lgkmcnt({n_after})")
        if t == 0:
            if s == 3:
                a.emit("s_barrier")
                for r in list(range(XA, XA + 4)) + list(range(WA, WA + 5)):
                    a.emit(f"v_add_u32 {vr(r)}, {sr(S_DELTA)}, {vr(r)}")
                if extra:
                    a.emit(f"v_add_u32 {vr(WA+5)}, {sr(S_NC)}, {vr(WA+5)}")
            a.emit(f"ds_read_b128 {vr(BFR+4*nxt,4)}, {vr(XA+ns)}")
        if t < 5:
            off = ns * 16 * 320
            a.emit(f"ds_read_b64_tr_b16 {vr(AF+24*nxt+4*t,2)}, {vr(WA+t)} offset:{off}")
            a.emit(f"ds_read_b64_tr_b16 {vr(AF+24*nxt+4*t+2,2)}, {vr(WA+t)} offset:{off+1280}")
        else:
            off = ns * 16 * 40
            a.emit(f"ds_read_b64_tr_b16 {vr(AF+24*nxt+20,2)}, {vr(WA+5)} offset:{off}")
            a.emit(f"ds_read_b64_tr_b16 {vr(AF+24*nxt+22,2)}, {vr(WA+5)} offset:{off+160}")

def mainloop(a, tag, extra, prof):
    nt = 6 if extra else 5
    a.emit("s_barrier")
    stamp(a, 1, prof)
    if prof: a.emit("s_waitcnt lgkmcnt(0)")
    a.emit(f"ds_read_b128 {vr(BFR,4)}, {vr(XA)}")
    for t in range(nt):
        if t < 5:
            a.emit(f"ds_read_b64_tr_b16 {vr(AF+4*t,2)}, {vr(WA+t)}")
            a.emit(f"ds_read_b64_tr_b16 {vr(AF+4*t+2,2)}, {vr(WA+t)} offset:1280")
        else:
            a.emit(f"ds_read_b64_tr_b16 {vr(AF+20,2)}, {vr(WA+5)}")
            a.emit(f"ds_read_b64_tr_b16 {vr(AF+22,2)}, {vr(WA+5)} offset:160")
    a.emit(f"s_mov_b32 {sr(S_CNT)}, 10")
    a.emit(f"s_mov_b32 {sr(S_BUF)}, 0")
    a.emit(f"s_mov_b32 {sr(S_K3)}, {STAGE}")
    a.emit(f"s_mov_b32 {sr(S_K4)}, 2560")
    a.emit(f"s_waitcnt lgkmcnt({2*(nt-1)})")
    a.label(f"P1_loop_{tag}")
    a.emit(f"s_cmp_eq_u32 {sr(S_BUF)}, 3")
    a.emit(f"s_cselect_b32 {sr(S_DELTA)}, {(-3*STAGE) & 0xffffffff}, {sr(S_K3)}")
    a.emit(f"s_cselect_b32 {sr(S_NC)}, {(-3*2560) & 0xffffffff}, {sr(S_K4)}")
    a.emit(f"s_add_u32 {sr(S_BUF)}, {sr(S_BUF)}, 1")
    a.emit(f"s_and_b32 {sr(S_BUF)}, {sr(S_BUF)}, 3")
    for s in range(4): kstep(a, s, extra)
    a.emit(f"s_sub_u32 {sr(S_CNT)}, {sr(S_CNT)}, 1")
    a.emit(f"s_cmp_lg_u32 {sr(S_CNT)}, 0")
    a.emit(f"s_cbranch_scc1 P1_loop_{tag}")
    a.emit("s_waitcnt lgkmcnt(0)")
    stamp(a, 2, prof)
    a.emit("s_nop 7")
    a.emit("s_nop 3")

def out_base(a, ws_off, mul_rb, mul_w, mul_g):
    a.emit(f"s_mul_i32 {sr(S_T)}, {sr(S_RB)}, {mul_rb}")
    a.emit(f"s_mul_i32 {sr(S_T2)}, {sr(S_W)}, {mul_w}")
    a.emit(f"s_add_u32 {sr(S_T)}, {sr(S_T)}, {sr(S_T2)}")
    a.emit(f"s_mul_i32 {sr(S_T2)}, {sr(S_G)}, {mul_g}")
    a.emit(f"s_add_u32 {sr(S_T)}, {sr(S_T)}, {sr(S_T2)}")
    a.emit(f"s_add_u32 {sr(S_T)}, {sr(S_T)}, {ws_off}")
    a.emit(f"s_add_u32 {sr(S_O)}, {sr(S_WS)}, {sr(S_T)}")
    a.emit(f"s_addc_u32 {sr(S_O+1)}, {sr(S_WS+1)}, 0")

def epi_AQ(a):
    out_base(a, WS_QF, 4 * 16 * 3072, 16 * 3072, 4 * 3072)
    def pair(p):
        L = []
        R = ACC + 20 * p
        e = E_ + 4 * (p & 1); o = e + 1; sh = e + 2; t = e + 3
        P = AF + 12 * p
        L.append(f"v_mul_f32 {vr(e)}, {vr(R)}, {vr(R)}")
        L.append(f"v_mul_f32 {vr(o)}, {vr(R+12)}, {vr(R+12)}")
        L.append(f"v_mul_f32 {vr(sh)}, {vr(R+8)}, {vr(R+8)}")
        for i in range(1, 8):
            L.append(f"v_fmac_f32 {vr(e)}, {vr(R+i)}, {vr(R+i)}")
            L.append(f"v_fmac_f32 {vr(o)}, {vr(R+12+i)}, {vr(R+12+i)}")
            if i < 4: L.append(f"v_fmac_f32 {vr(sh)}, {vr(R+8+i)}, {vr(R+8+i)}")
        L.append(f"v_cndmask_b32 {vr(t)}, 0, {vr(sh)}, {sr(S_MLO,2)}")
        L.append(f"v_add_f32 {vr(e)}, {vr(e)}, {vr(t)}")
        L.append(f"v_cndmask_b32 {vr(t)}, 0, {vr(sh)}, {sr(S_MHI,2)}")
        L.append(f"v_add_f32 {vr(o)}, {vr(o)}, {vr(t)}")
        for i in range(4): L.append(f"v_cvt_pk_bf16_f32 {vr(P+i)}, {vr(R+2*i)}, {vr(R+2*i+1)}")
        L.append(f"v_permlane32_swap_b32 {vr(o)}, {vr(e)}")
        for i in range(4): L.append(f"v_cvt_pk_bf16_f32 {vr(P+4+i)}, {vr(R+12+2*i)}, {vr(R+12+2*i+1)}")
        L.append(f"v_add_f32 {vr(o)}, {vr(o)}, {vr(e)}")
        L.append(f"v_cvt_pk_bf16_f32 {vr(P+8)}, {vr(R+8)}, {vr(R+9)}")
        L.append(f"v_sqrt_f32 {vr(P+10)}, {vr(o)}")
        L.append(f"v_cvt_pk_bf16_f32 {vr(P+9)}, {vr(R+10)}, {vr(R+11)}")
        L.append(f"v_mov_b32 {vr(P+11)}, 0")
        return L
    for p0 in (0, 2):
        for ins in interleave(pair(p0), pair(p0 + 1)): a.emit(ins)
        for p in (p0, p0 + 1):
            P = AF + 12 * p
            for f in range(3):
                a.emit(f"global_store_dwordx4 {vr(V_L16)}, {vr(P+4*f,4)}, {sr(S_O,2)} offset:{f*1024}{ST}")
            if p < 3:
                a.emit(f"s_add_u32 {sr(S_O)}, {sr(S_O)}, 3072")
                a.emit(f"s_addc_u32 {sr(S_O+1)}, {sr(S_O+1)}, 0")

def epi_K(a):
    R = XT
    a.emit(f"s_mov_b32 {sr(S_K1)}, {f2u(CSCALE)}")
    for i in range(12): a.emit(f"v_mul_f32 {vr(R+i)}, {sr(S_K1)}, {vr(R+i)}")
    x = E_; y = E_ + 1; t = E_ + 2; t2 = E_ + 3
    a.emit(f"v_mul_f32 {vr(x)}, {vr(R)}, {vr(R)}")
    a.emit(f"v_mul_f32 {vr(y)}, {vr(R+8)}, {vr(R+8)}")
    for i in range(1, 8): a.emit(f"v_fmac_f32 {vr(x)}, {vr(R+i)}, {vr(R+i)}")
    for i in range(1, 4): a.emit(f"v_fmac_f32 {vr(y)}, {vr(R+8+i)}, {vr(R+8+i)}")
    a.emit(f"v_cndmask_b32 {vr(y)}, 0, {vr(y)}, {sr(S_MLO,2)}")
    a.emit(f"v_add_f32 {vr(x)}, {vr(x)}, {vr(y)}")
    P = E_ + 8
    for i in range(4): a.emit(f"v_cvt_pk_bf16_f32 {vr(P+i)}, {vr(R+2*i)}, {vr(R+2*i+1)}")
    a.emit(f"v_mov_b32 {vr(t)}, {vr(x)}")
    a.emit(f"v_cvt_pk_bf16_f32 {vr(R+12)}, {vr(R+8)}, {vr(R+9)}")
    a.emit(f"v_cvt_pk_bf16_f32 {vr(R+13)}, {vr(R+10)}, {vr(R+11)}")
    a.emit(f"v_permlane32_swap_b32 {vr(t)}, {vr(x)}")
    a.emit(f"v_mov_b32 {vr(R+14)}, 0x3f803f80")
    a.emit(f"v_mov_b32 {vr(R+15)}, 0x3f80")
    a.emit(f"v_add_f32 {vr(x)}, {vr(x)}, {vr(t)}")
    a.emit(f"v_cndmask_b32 {vr(P+4)}, {vr(R+14)}, {vr(R+12)}, {sr(S_MLO,2)}")
    a.emit(f"v_cndmask_b32 {vr(P+5)}, {vr(R+15)}, {vr(R+13)}, {sr(S_MLO,2)}")
    a.emit(f"v_cndmask_b32 {vr(P+6)}, {vr(R+14)}, {vr(R+12)}, {sr(S_MHI,2)}")
    a.emit(f"v_cndmask_b32 {vr(P+7)}, {vr(R+15)}, {vr(R+13)}, {sr(S_MHI,2)}")
    out_base(a, WS_KV, 4 * 4096, 4096, 0)
    a.emit(f"global_store_dwordx4 {vr(V_L16)}, {vr(P,4)}, {sr(S_O,2)}{ST}")
    a.emit(f"global_store_dwordx4 {vr(V_L16)}, {vr(P+4,4)}, {sr(S_O,2)} offset:1024{ST}")
    for r in (8, 4, 2, 1):
        a.emit(f"v_max_f32_dpp {vr(x)}, {vr(x)}, {vr(x)} row_ror:{r} row_mask:0xf bank_mask:0xf")
    a.emit(f"v_readlane_b32 {sr(S_K1)}, {vr(x)}, 0")
    a.emit(f"v_readlane_b32 {sr(S_K2)}, {vr(x)}, 16")
    out_base(a, WS_KMAX, 16, 4, 0)
    a.emit(f"s_max_u32 {sr(S_K1)}, {sr(S_K1)}, {sr(S_K2)}")
    a.emit(f"v_mov_b32 {vr(t)}, {sr(S_K1)}")
    a.emit(f"v_mov_b32 {vr(t2)}, 0")
    a.emit("s_mov_b64 exec, 1")
    a.emit(f"global_store_dword {vr(t2)}, {vr(t)}, {sr(S_O,2)}{ST}")
    a.emit("s_mov_b64 exec, -1")

def epi_V(a):
    R = XT; P = E_ + 8
    n = E_; fill = E_ + 1
    a.emit(f"v_and_b32 {vr(n)}, 31, {vr(V_LANE)}")
    a.emit(f"v_cmp_eq_u32 vcc, 20, {vr(n)}")
    a.emit(f"v_mov_b32 {vr(E_+2)}, 0x3f803f80")
    for i in range(8): a.emit(f"v_cvt_pk_bf16_f32 {vr(P+i)}, {vr(R+2*i)}, {vr(R+2*i+1)}")
    a.emit(f"v_cndmask_b32 {vr(fill)}, 0, {vr(E_+2)}, vcc")
    a.emit(f"v_cmp_gt_u32 vcc, 20, {vr(n)}")
    for i in range(8): a.emit(f"v_cndmask_b32 {vr(P+i)}, {vr(fill)}, {vr(P+i)}, vcc")
    out_base(a, WS_KV + 2048, 4 * 4096, 4096, 0)
    a.emit(f"global_store_dwordx4 {vr(V_L16)}, {vr(P,4)}, {sr(S_O,2)}{ST}")
    a.emit(f"global_store_dwordx4 {vr(V_L16)}, {vr(P+4,4)}, {sr(S_O,2)} offset:1024{ST}")

QP = 96
PB = [0, 16, 32, 48]
EPN = [64, 136]
PH8 = [84, 156]
PHT = 92
WF = [164, 170, 176, 182]
WPA = 188
FT = [190, 206]

def pack_pairs(a, pairs):
    Ls = []
    for n, p in enumerate(pairs):
        R = ACC + 20 * p; P = QP + 10 * n
        for i in range(4): a.emit(f"v_cvt_pk_bf16_f32 {vr(P+i)}, {vr(R+2*i)}, {vr(R+2*i+1)}")
        for i in range(4): a.emit(f"v_cvt_pk_bf16_f32 {vr(P+4+i)}, {vr(R+12+2*i)}, {vr(R+12+2*i+1)}")
        for i in range(2): a.emit(f"v_cvt_pk_bf16_f32 {vr(P+8+i)}, {vr(R+8+2*i)}, {vr(R+8+2*i+1)}")

def wphi_addr(a):
    l = V_LANE; t = FT[0]
    a.emit(f"v_bfe_u32 {vr(t)}, {vr(l)}, 4, 1")
    a.emit(f"v_lshlrev_b32 {vr(t)}, 2, {vr(t)}")
    a.emit(f"v_and_b32 {vr(t+1)}, 3, {vr(l)}")
    a.emit(f"v_add_u32 {vr(t)}, {vr(t)}, {vr(t+1)}")
    a.emit(f"v_min_u32 {vr(t)}, 4, {vr(t)}")
    a.emit(f"v_lshlrev_b32 {vr(t)}, 3, {vr(t)}")
    a.emit(f"v_bfe_u32 {vr(t+1)}, {vr(l)}, 2, 2")
    a.emit(f"v_mul_u32_u24 {vr(t+1)}, 40, {vr(t+1)}")
    a.emit(f"v_add_u32 {vr(t)}, {vr(t)}, {vr(t+1)}")
    a.emit(f"v_add_u32 {vr(WPA+1)}, {EXTRA + 16*40}, {vr(t)}")
    a.emit(f"v_lshrrev_b32 {vr(t+1)}, 5, {vr(l)}")
    a.emit(f"v_mul_u32_u24 {vr(t+1)}, 160, {vr(t+1)}")
    a.emit(f"v_add_u32 {vr(t)}, {vr(t)}, {vr(t+1)}")
    a.emit(f"v_add_u32 {vr(WPA)}, {EXTRA}, {vr(t)}")

def wphi_read(a, p):
    for e in range(2):
        hh = 2 * p + e; W = WF[2 * (p & 1) + e]
        a.emit(f"ds_read_b64_tr_b16 {vr(W,2)}, {vr(WPA)} offset:{hh*800}")
        a.emit(f"ds_read_b64_tr_b16 {vr(W+2,2)}, {vr(WPA)} offset:{hh*800+8*40}")
        a.emit(f"ds_read_b64_tr_b16 {vr(W+4,2)}, {vr(WPA+1)} offset:{hh*800}")

def phi_mfma(a, p):
    Q = QP + 10 * p
    a.emit("s_waitcnt lgkmcnt(0)")
    for e in range(2):
        W = WF[2 * (p & 1) + e]; m = S_MLO if e == 0 else S_MHI
        a.emit(f"v_cndmask_b32 {vr(W+4)}, 0, {vr(W+4)}, {sr(m,2)}")
        a.emit(f"v_cndmask_b32 {vr(W+5)}, 0, {vr(W+5)}, {sr(m,2)}")
    for e in range(2):
        W = WF[2 * (p & 1) + e]; P = PB[2 * (p & 1) + e]
        mfma(a, P, W, Q + 4 * e, None)
    for e in range(2):
        W = WF[2 * (p & 1) + e]; P = PB[2 * (p & 1) + e]
        mfma8(a, P, W + 4, Q + 8, P)

def featmap(p, e):
    L = []
    P = PB[2 * (p & 1) + e]; EP = EPN[e]; EN = EP + 10
    M = FT[e]; N = M + 1; T = M + 2; T2 = M + 3; SP = M + 4; SN = M + 6
    out = [PH8[e] + i for i in range(8)] + [PHT + 2 * e, PHT + 2 * e + 1]
    L.append(f"v_cndmask_b32 {vr(P+8)}, {vr(P+8)}, {vr(P+10)}, {sr(S_MHI,2)}")
    L.append(f"v_cndmask_b32 {vr(P+9)}, {vr(P+9)}, {vr(P+11)}, {sr(S_MHI,2)}")
    L.append(f"v_max3_f32 {vr(M)}, {vr(P)}, {vr(P+1)}, {vr(P+2)}")
    L.append(f"v_max3_f32 {vr(N)}, -{vr(P)}, -{vr(P+1)}, -{vr(P+2)}")
    for i in (3, 5, 7):
        L.append(f"v_max3_f32 {vr(M)}, {vr(M)}, {vr(P+i)}, {vr(P+i+1)}")
        L.append(f"v_max3_f32 {vr(N)}, {vr(N)}, -{vr(P+i)}, -{vr(P+i+1)}")
    L.append(f"v_max_f32 {vr(M)}, {vr(M)}, {vr(P+9)}")
    L.append(f"v_max_f32 {vr(N)}, {vr(N)}, -{vr(P+9)}")
    L.append(f"v_permlane32_swap_b32 {vr(M)}, {vr(N)}")
    L.append(f"v_max_f32 {vr(M)}, {vr(M)}, {vr(N)}")
    L.append(f"v_mul_f32 {vr(M)}, {sr(S_K2)}, {vr(M)}")
    L.append(f"v_mov_b32 {vr(N)}, {vr(M)}")
    L.append(f"v_permlane32_swap_b32 {vr(M)}, {vr(N)}")
    for i in range(10):
        L.append(f"v_fma_f32 {vr(EP+i)}, {vr(P+i)}, {sr(S_K1)}, {vr(M)}")
        L.append(f"v_fma_f32 {vr(EN+i)}, {vr(P+i)}, {sr(S_K2)}, {vr(N)}")
    for i in range(10):
        L.append(f"v_exp_f32 {vr(EP+i)}, {vr(EP+i)}")
        L.append(f"v_exp_f32 {vr(EN+i)}, {vr(EN+i)}")
    L.append(f"v_pk_add_f32 {vr(SP,2)}, {vr(EP,2)}, {vr(EP+2,2)}")
    L.append(f"v_pk_add_f32 {vr(SN,2)}, {vr(EN,2)}, {vr(EN+2,2)}")
    for i in (4, 6, 8):
        L.append(f"v_pk_add_f32 {vr(SP,2)}, {vr(SP,2)}, {vr(EP+i,2)}")
        L.append(f"v_pk_add_f32 {vr(SN,2)}, {vr(SN,2)}, {vr(EN+i,2)}")
    L.append(f"v_add_f32 {vr(M)}, {vr(SP)}, {vr(SP+1)}")
    L.append(f"v_add_f32 {vr(N)}, {vr(SN)}, {vr(SN+1)}")
    L.append(f"v_permlane32_swap_b32 {vr(M)}, {vr(N)}")
    L.append(f"v_add_f32 {vr(M)}, {vr(M)}, {vr(N)}")
    L.append(f"v_rcp_f32 {vr(T)}, {vr(M)}")
    L.append(f"v_mov_b32 {vr(T2)}, {vr(T)}")
    L.append(f"v_permlane32_swap_b32 {vr(T)}, {vr(T2)}")
    for i in range(5):
        L.append(f"v_pk_mul_f32 {vr(EP+2*i,2)}, {vr(EP+2*i,2)}, {vr(T,2)} op_sel_hi:[1,0]")
        L.append(f"v_pk_mul_f32 {vr(EN+2*i,2)}, {vr(EN+2*i,2)}, {vr(T,2)} op_sel:[0,1] op_sel_hi:[1,1]")
    for i in range(5):
        L.append(f"v_cvt_pk_bf16_f32 {vr(out[i])}, {vr(EP+2*i)}, {vr(EP+2*i+1)}")
        L.append(f"v_cvt_pk_bf16_f32 {vr(out[5+i])}, {vr(EN+2*i)}, {vr(EN+2*i+1)}")
    return L

def consts_phi(a):
    a.emit(f"s_mov_b32 {sr(S_K1)}, {LOG2E}")
    a.emit(f"s_mov_b32 {sr(S_K2)}, {LOG2E | 0x80000000}")

def epi_Bq(a):
    wphi_addr(a)
    wphi_read(a, 0)
    pack_pairs(a, [0, 1, 2, 3])
    consts_phi(a)
    out_base(a, WS_PHIQ, 4 * 16 * 5120, 16 * 5120, 4 * 5120)
    a.emit(f"v_add_u32 {vr(V_T0)}, 3072, {vr(V_L16)}")
    phi_mfma(a, 0)
    for p in range(4):
        if p < 3:
            wphi_read(a, p + 1)
            phi_mfma(a, p + 1)
        for ins in interleave(featmap(p, 0), featmap(p, 1)): a.emit(ins)
        a.emit(f"global_store_dwordx4 {vr(V_L16)}, {vr(PH8[0],4)}, {sr(S_O,2)}{ST}")
        a.emit(f"global_store_dwordx4 {vr(V_L16)}, {vr(PH8[0]+4,4)}, {sr(S_O,2)} offset:1024{ST}")
        a.emit(f"global_store_dwordx4 {vr(V_L16)}, {vr(PH8[1],4)}, {sr(S_O,2)} offset:2048{ST}")
        a.emit(f"global_store_dwordx4 {vr(V_L16)}, {vr(PH8[1]+4,4)}, {sr(S_O,2)} offset:3072{ST}")
        a.emit(f"global_store_dwordx4 {vr(V_T0)}, {vr(PHT,4)}, {sr(S_O,2)} offset:1024{ST}")
        if p < 3:
            a.emit(f"s_add_u32 {sr(S_O)}, {sr(S_O)}, 5120")
            a.emit(f"s_addc_u32 {sr(S_O+1)}, {sr(S_O+1)}, 0")

PHI_L = 0; V_L = 40960
def epi_Bkv(a):
    wphi_addr(a)
    wphi_read(a, 0)
    pack_pairs(a, [0, 1, 2, 3])
    consts_phi(a)
    a.emit("s_barrier")
    s_ = V_T0; pa = V_T1; va = V_T2
    t4 = 214; t5 = 215; o1 = 216
    a.emit(f"v_and_b32 {vr(s_)}, 31, {vr(V_LANE)}")
    a.emit(f"s_lshl_b32 {sr(S_T)}, {sr(S_W)}, 5")
    a.emit(f"v_add_u32 {vr(s_)}, {sr(S_T)}, {vr(s_)}")
    a.emit(f"v_lshrrev_b32 {vr(V_T3)}, 5, {vr(V_LANE)}")
    a.emit(f"v_mul_u32_u24 {vr(pa)}, 80, {vr(s_)}")
    a.emit(f"v_lshl_add_u32 {vr(pa)}, {vr(V_T3)}, 3, {vr(pa)}")
    a.emit(f"v_mul_u32_u24 {vr(va)}, 48, {vr(s_)}")
    a.emit(f"v_add_u32 {vr(va)}, {V_L}, {vr(va)}")
    a.emit(f"v_lshl_add_u32 {vr(t4)}, {vr(V_T3)}, 3, {vr(va)}")
    a.emit(f"v_mul_u32_u24 {vr(t5)}, 6144, {vr(V_T3)}")
    a.emit(f"v_add_u32 {vr(t5)}, {vr(t5)}, {vr(va)}")
    a.emit(f"v_mov_b32 {vr(o1)}, 0x3f80")
    a.emit(f"v_mov_b32 {vr(o1+1)}, 0")
    phi_mfma(a, 0)
    for pp in range(2):
        Q = QP + 10 * (2 + pp)
        for e in range(2):
            hd = 2 * pp + e
            a.emit(f"ds_write_b64 {vr(t4)}, {vr(Q+4*e,2)} offset:{hd*6144}")
            a.emit(f"ds_write_b64 {vr(t4)}, {vr(Q+4*e+2,2)} offset:{hd*6144+16}")
            a.emit(f"ds_write_b64 {vr(va)}, {vr(o1,2)} offset:{hd*6144+40}")
        a.emit(f"ds_write_b64 {vr(t5)}, {vr(Q+8,2)} offset:{2*pp*6144+32}")
    for p in range(2):
        if p < 1:
            wphi_read(a, p + 1)
            phi_mfma(a, p + 1)
        for ins in interleave(featmap(p, 0), featmap(p, 1)): a.emit(ins)
        for e in range(2):
            hh = 2 * p + e
            for gm in range(5):
                col = 32 * (gm >> 2) + 8 * (gm & 3)
                r = PH8[e] + 2 * gm if gm < 4 else PHT + 2 * e
                a.emit(f"ds_write_b64 {vr(pa)}, {vr(r,2)} offset:{PHI_L + hh*10240 + col*2}")
    a.emit("s_waitcnt lgkmcnt(0)")
    a.emit("s_barrier")
    l = V_LANE; t = FT[0]
    a.emit(f"v_lshrrev_b32 {vr(t)}, 5, {vr(l)}")
    a.emit(f"v_lshlrev_b32 {vr(t)}, 3, {vr(t)}")
    a.emit(f"v_bfe_u32 {vr(t+1)}, {vr(l)}, 2, 2")
    a.emit(f"v_add_u32 {vr(t)}, {vr(t)}, {vr(t+1)}")
    a.emit(f"v_bfe_u32 {vr(t+1)}, {vr(l)}, 4, 1")
    a.emit(f"v_lshlrev_b32 {vr(t+1)}, 5, {vr(t+1)}")
    a.emit(f"v_and_b32 {vr(t+2)}, 3, {vr(l)}")
    a.emit(f"v_lshl_add_u32 {vr(t+1)}, {vr(t+2)}, 3, {vr(t+1)}")
    a.emit(f"v_mul_u32_u24 {vr(t+2)}, 80, {vr(t)}")
    a.emit(f"v_add_u32 {vr(t+2)}, {vr(t+2)}, {vr(t+1)}")
    a.emit(f"s_mul_i32 {sr(S_T)}, {sr(S_W)}, 10240")
    a.emit(f"v_add_u32 {vr(t+2)}, {sr(S_T)}, {vr(t+2)}")
    a.emit(f"v_mul_u32_u24 {vr(t+3)}, 48, {vr(t)}")
    a.emit(f"v_add_u32 {vr(t+3)}, {vr(t+3)}, {vr(t+1)}")
    a.emit(f"s_mul_i32 {sr(S_T)}, {sr(S_W)}, 6144")
    a.emit(f"s_add_u32 {sr(S_T)}, {sr(S_T)}, {V_L}")
    a.emit(f"v_add_u32 {vr(t+3)}, {sr(S_T)}, {vr(t+3)}")
    F = 64
    def rd(ks):
        b = F + 12 * (ks & 1)
        a.emit(f"ds_read_b64_tr_b16 {vr(b,2)}, {vr(t+2)} offset:{ks*16*80}")
        a.emit(f"ds_read_b64_tr_b16 {vr(b+2,2)}, {vr(t+2)} offset:{ks*16*80+4*80}")
        a.emit(f"ds_read_b64_tr_b16 {vr(b+4,2)}, {vr(t+2)} offset:{ks*16*80+64}")
        a.emit(f"ds_read_b64_tr_b16 {vr(b+6,2)}, {vr(t+2)} offset:{ks*16*80+4*80+64}")
        a.emit(f"ds_read_b64_tr_b16 {vr(b+8,2)}, {vr(t+3)} offset:{ks*16*48}")
        a.emit(f"ds_read_b64_tr_b16 {vr(b+10,2)}, {vr(t+3)} offset:{ks*16*48+4*48}")
    rd(0)
    for ks in range(8):
        if ks < 7:
            rd(ks + 1)
            a.emit("s_waitcnt lgkmcnt(6)")
        else:
            a.emit("s_waitcnt lgkmcnt(0)")
        b = F + 12 * (ks & 1)
        mfma(a, 0, b, b + 8, None if ks == 0 else 0)
        mfma(a, 16, b + 4, b + 8, None if ks == 0 else 16)
    out_base(a, WS_KVP, 32 * 5120, 5120, 4 * 5120)
    for i in range(5):
        if i == 4:
            a.emit(f"s_add_u32 {sr(S_O)}, {sr(S_O)}, 4096")
            a.emit(f"s_addc_u32 {sr(S_O+1)}, {sr(S_O+1)}, 0")
        a.emit(f"global_store_dwordx4 {vr(V_L16)}, {vr(4*i,4)}, {sr(S_O,2)} offset:{(i%4)*1024}{ST}")

def phase1(a, prof):
    name = "P1"
    a.emit("s_load_dwordx4 s[44:47], s[0:1], 0")
    a.emit("s_load_dwordx4 s[48:51], s[0:1], 16")
    a.emit("s_load_dwordx4 s[52:55], s[0:1], 40")
    a.emit("s_load_dwordx2 s[56:57], s[0:1], 56")
    a.emit(f"v_mov_b32 {vr(V_LANE)}, {vr(V_LANE_G)}")
    a.emit(f"v_mov_b32 {vr(V_L16)}, {vr(V_L16_G)}")
    a.emit(f"s_mov_b32 {sr(S_W)}, {sr(S_WG)}")
    ids(a)
    a.emit(f"s_mov_b32 {sr(S_MLO)}, -1"); a.emit(f"s_mov_b32 {sr(S_MLO+1)}, 0")
    a.emit(f"s_mov_b32 {sr(S_MHI)}, 0"); a.emit(f"s_mov_b32 {sr(S_MHI+1)}, -1")
    a.emit(f"s_cmp_ge_u32 {sr(S_W)}, 4")
    a.emit(f"s_cbranch_scc1 {name}_loader")
    l = V_LANE
    a.emit(f"v_and_b32 {vr(V_T0)}, 31, {vr(l)}")
    a.emit(f"v_bfe_u32 {vr(V_T1)}, {vr(l)}, 1, 3")
    a.emit(f"v_lshrrev_b32 {vr(V_T2)}, 5, {vr(l)}")
    a.emit(f"v_lshlrev_b32 {vr(V_T0)}, 7, {vr(V_T0)}")
    a.emit(f"s_lshl_b32 {sr(S_T)}, {sr(S_W)}, 12")
    a.emit(f"v_add_u32 {vr(V_T0)}, {sr(S_T)}, {vr(V_T0)}")
    for s in range(4):
        a.emit(f"v_add_u32 {vr(V_T3)}, {2*s}, {vr(V_T2)}")
        a.emit(f"v_xor_b32 {vr(V_T3)}, {vr(V_T3)}, {vr(V_T1)}")
        a.emit(f"v_lshl_add_u32 {vr(XA+s)}, {vr(V_T3)}, 4, {vr(V_T0)}")
    a.emit(f"v_lshrrev_b32 {vr(V_T0)}, 5, {vr(l)}")
    a.emit(f"v_lshlrev_b32 {vr(V_T0)}, 3, {vr(V_T0)}")
    a.emit(f"v_bfe_u32 {vr(V_T1)}, {vr(l)}, 2, 2")
    a.emit(f"v_add_u32 {vr(V_T0)}, {vr(V_T0)}, {vr(V_T1)}")
    a.emit(f"v_mul_u32_u24 {vr(E_)}, 320, {vr(V_T0)}")
    a.emit(f"v_add_u32 {vr(E_)}, {XS}, {vr(E_)}")
    a.emit(f"v_mul_u32_u24 {vr(E_+1)}, 40, {vr(V_T0)}")
    a.emit(f"v_add_u32 {vr(E_+1)}, {EXTRA}, {vr(E_+1)}")
    a.emit(f"v_bfe_u32 {vr(V_T1)}, {vr(l)}, 4, 1")
    a.emit(f"v_lshlrev_b32 {vr(V_T1)}, 1, {vr(V_T1)}")
    a.emit(f"v_bfe_u32 {vr(V_T2)}, {vr(l)}, 1, 1")
    a.emit(f"v_add_u32 {vr(V_T1)}, {vr(V_T1)}, {vr(V_T2)}")
    a.emit(f"v_and_b32 {vr(V_T2)}, 1, {vr(l)}")
    a.emit(f"v_lshl_add_u32 {vr(V_T3)}, {vr(V_T1)}, 1, {vr(V_T2)}")
    a.emit(f"v_min_u32 {vr(V_T3)}, 4, {vr(V_T3)}")
    a.emit(f"v_lshl_add_u32 {vr(WA+5)}, {vr(V_T3)}, 3, {vr(E_+1)}")
    for t in range(5):
        rho = E_ + 2; p = E_ + 3; u = E_ + 4; G = E_ + 5; x = E_ + 6
        a.emit(f"v_add_u32 {vr(rho)}, {4*t}, {vr(V_T1)}")
        a.emit(f"v_mul_u32_u24 {vr(p)}, 13, {vr(rho)}")
        a.emit(f"v_lshrrev_b32 {vr(p)}, 6, {vr(p)}")
        a.emit(f"v_mul_u32_u24 {vr(u)}, 5, {vr(p)}")
        a.emit(f"v_sub_u32 {vr(u)}, {vr(rho)}, {vr(u)}")
        a.emit(f"v_lshl_add_u32 {vr(G)}, {vr(u)}, 1, {vr(V_T2)}")
        a.emit(f"v_cmp_lt_u32 vcc, 2, {vr(u)}")
        a.emit(f"v_lshlrev_b32 {vr(x)}, 2, {vr(V_T2)}")
        a.emit(f"v_subrev_u32 {vr(rho)}, 1, {vr(G)}")
        a.emit(f"v_cndmask_b32 {vr(G)}, {vr(G)}, {vr(rho)}, vcc")
        a.emit(f"v_cmp_eq_u32 vcc, 2, {vr(u)}")
        a.emit(f"v_add_u32 {vr(x)}, {vr(x)}, {vr(G)}")
        a.emit(f"v_mul_u32_u24 {vr(p)}, 10, {vr(p)}")
        a.emit(f"v_cndmask_b32 {vr(G)}, {vr(G)}, {vr(x)}, vcc")
        a.emit(f"v_add_u32 {vr(G)}, {vr(G)}, {vr(p)}")
        a.emit(f"v_lshl_add_u32 {vr(WA+t)}, {vr(G)}, 3, {vr(E_)}")
    for i in range(4): a.emit(f"v_mov_b32 {vr(BFR+i)}, 0")
    for t in range(6): mfma(a, ACC + 16 * t, BFR, BFR, None)
    a.emit("s_waitcnt lgkmcnt(0)")
    init_check(a, V_T0, V_T1)
    a.emit(f"s_cmp_eq_u32 {sr(S_ROLE)}, 1")
    a.emit(f"s_cbranch_scc1 {name}_mainK")
    a.emit(f"s_cmp_eq_u32 {sr(S_ROLE)}, 2")
    a.emit(f"s_cbranch_scc1 {name}_mainV")
    mainloop(a, "P", None, prof)
    a.emit(f"s_cmp_eq_u32 {sr(S_ROLE)}, 3")
    a.emit(f"s_cbranch_scc1 {name}_epiBq")
    a.emit(f"s_cmp_eq_u32 {sr(S_ROLE)}, 4")
    a.emit(f"s_cbranch_scc1 {name}_epiBkv")
    a.label(f"{name}_epiAQ")
    epi_AQ(a)
    a.emit(f"s_branch {name}_fin")
    a.label(f"{name}_mainK")
    mainloop(a, "K", 'K', prof)
    epi_K(a)
    a.emit(f"s_branch {name}_epiAQ")
    a.label(f"{name}_mainV")
    mainloop(a, "V", 'V', prof)
    epi_V(a)
    a.emit(f"s_branch {name}_epiAQ")
    a.label(f"{name}_epiBq")
    epi_Bq(a)
    a.emit(f"s_branch {name}_fin")
    a.label(f"{name}_epiBkv")
    epi_Bkv(a)
    a.emit(f"s_branch {name}_fin")
    a.label(f"{name}_loader")
    a.emit(f"s_sub_u32 {sr(S_W)}, {sr(S_W)}, 4")
    for n in range(4):
        a.emit(f"v_lshrrev_b32 {vr(V_T0)}, 3, {vr(l)}")
        a.emit(f"v_add_u32 {vr(V_T0)}, {8*n}, {vr(V_T0)}")
        a.emit(f"v_bfe_u32 {vr(V_T1)}, {vr(V_T0)}, 1, 3")
        a.emit(f"v_and_b32 {vr(V_T2)}, 7, {vr(l)}")
        a.emit(f"v_xor_b32 {vr(V_T1)}, {vr(V_T1)}, {vr(V_T2)}")
        a.emit(f"v_mul_u32_u24 {vr(V_T0)}, 1280, {vr(V_T0)}")
        a.emit(f"v_lshl_add_u32 {vr(V_LO+n)}, {vr(V_T1)}, 4, {vr(V_T0)}")
    a.emit(f"s_cmp_lt_u32 {sr(S_ROLE)}, 3")
    a.emit(f"s_mov_b32 {sr(S_WADV)}, 3840")
    a.emit(f"s_cselect_b32 {sr(S_WADV)}, 1280, {sr(S_WADV)}")
    a.emit(f"s_cmp_eq_u32 {sr(S_ROLE)}, 4")
    a.emit(f"s_cselect_b32 {sr(S_T2)}, 1120, 0")
    a.emit(f"v_mov_b32 {vr(V_LO+9)}, {sr(S_T2)}")
    for n in range(5):
        a.emit(f"v_add_u32 {vr(V_T0)}, {64*n}, {vr(l)}")
        div20(a, V_T1, V_T2, V_T0)
        a.emit(f"v_cmp_le_u32 vcc, 10, {vr(V_T2)}")
        a.emit(f"v_mul_u32_u24 {vr(V_T1)}, {sr(S_WADV)}, {vr(V_T1)}")
        a.emit(f"v_lshl_add_u32 {vr(V_T1)}, {vr(V_T2)}, 4, {vr(V_T1)}")
        a.emit(f"v_cndmask_b32 {vr(V_T3)}, 0, {vr(V_LO+9)}, vcc")
        a.emit(f"v_add_u32 {vr(V_LO+4+n)}, {vr(V_T1)}, {vr(V_T3)}")
    a.emit("s_waitcnt lgkmcnt(0)")
    a.emit(f"s_cmp_lt_u32 {sr(S_ROLE)}, 3")
    a.emit(f"s_cselect_b32 {sr(S_X)}, s44, s52")
    a.emit(f"s_cselect_b32 {sr(S_X+1)}, s45, s53")
    a.emit(f"s_cselect_b32 {sr(S_WB)}, s46, s54")
    a.emit(f"s_cselect_b32 {sr(S_WB+1)}, s47, s55")
    a.emit(f"s_lshl_b32 {sr(S_T)}, {sr(S_RB)}, 2")
    a.emit(f"s_add_u32 {sr(S_T)}, {sr(S_T)}, {sr(S_W)}")
    a.emit(f"s_mul_i32 {sr(S_T)}, {sr(S_T)}, {32*1280}")
    a.emit(f"s_add_u32 {sr(S_X)}, {sr(S_X)}, {sr(S_T)}")
    a.emit(f"s_addc_u32 {sr(S_X+1)}, {sr(S_X+1)}, 0")
    a.emit(f"s_mul_i32 {sr(S_T)}, {sr(S_W)}, {sr(S_WADV)}")
    a.emit(f"s_lshl_b32 {sr(S_T)}, {sr(S_T)}, 4")
    a.emit(f"s_mul_i32 {sr(S_T2)}, {sr(S_G)}, 320")
    a.emit(f"s_mul_i32 {sr(S_K1)}, {sr(S_G)}, 160")
    a.emit(f"s_add_u32 {sr(S_K1)}, {sr(S_K1)}, 1280")
    a.emit(f"s_cmp_eq_u32 {sr(S_ROLE)}, 4")
    a.emit(f"s_cselect_b32 {sr(S_T2)}, {sr(S_K1)}, {sr(S_T2)}")
    a.emit(f"s_add_u32 {sr(S_T)}, {sr(S_T)}, {sr(S_T2)}")
    a.emit(f"s_add_u32 {sr(S_WB)}, {sr(S_WB)}, {sr(S_T)}")
    a.emit(f"s_addc_u32 {sr(S_WB+1)}, {sr(S_WB+1)}, 0")
    a.emit(f"s_lshl_b32 {sr(S_WADV)}, {sr(S_WADV)}, 6")
    a.emit(f"s_lshl_b32 {sr(S_M0X)}, {sr(S_W)}, 12")
    a.emit(f"s_mul_i32 {sr(S_M0W)}, {sr(S_W)}, 5120")
    a.emit(f"s_add_u32 {sr(S_M0W)}, {sr(S_M0W)}, {XS}")
    a.emit(f"s_min_u32 {sr(S_T)}, {sr(S_W)}, 2")
    a.emit(f"s_lshl_b32 {sr(S_M0E)}, {sr(S_T)}, 10")
    a.emit(f"v_add_u32 {vr(V_LO+9)}, {sr(S_M0E)}, {vr(V_L16)}")
    a.emit(f"s_add_u32 {sr(S_M0E)}, {sr(S_M0E)}, {EXTRA}")
    a.emit(f"s_cmp_lt_u32 {sr(S_W)}, 2")
    a.emit(f"s_cselect_b32 {sr(S_EXM+1)}, -1, 0")
    a.emit(f"s_mov_b32 {sr(S_EXM)}, -1")
    a.emit(f"s_cmp_eq_u32 {sr(S_ROLE)}, 1")
    a.emit(f"s_cselect_b32 {sr(S_EX)}, s48, s50")
    a.emit(f"s_cselect_b32 {sr(S_EX+1)}, s49, s51")
    a.emit(f"s_lshl_b32 {sr(S_T)}, {sr(S_ROT)}, 7")
    a.emit(f"s_add_u32 {sr(S_X)}, {sr(S_X)}, {sr(S_T)}")
    a.emit(f"s_addc_u32 {sr(S_X+1)}, {sr(S_X+1)}, 0")
    a.emit(f"s_mul_i32 {sr(S_T)}, {sr(S_ROT)}, {sr(S_WADV)}")
    a.emit(f"s_add_u32 {sr(S_WB)}, {sr(S_WB)}, {sr(S_T)}")
    a.emit(f"s_addc_u32 {sr(S_WB+1)}, {sr(S_WB+1)}, 0")
    a.emit(f"s_mul_i32 {sr(S_T)}, {sr(S_ROT)}, 2560")
    a.emit(f"s_add_u32 {sr(S_EX)}, {sr(S_EX)}, {sr(S_T)}")
    a.emit(f"s_addc_u32 {sr(S_EX+1)}, {sr(S_EX+1)}, 0")
    a.emit(f"s_mov_b32 {sr(S_KC)}, {sr(S_ROT)}")
    a.emit(f"s_mul_i32 {sr(S_K2)}, {sr(S_WADV)}, -9")
    def chunk(c, extra):
        buf = c % 4
        if c > 0:
            a.emit(f"s_add_u32 {sr(S_KC)}, {sr(S_KC)}, 1")
            a.emit(f"s_cmp_eq_u32 {sr(S_KC)}, 10")
            a.emit(f"s_cselect_b32 {sr(S_KC)}, 0, {sr(S_KC)}")
            a.emit(f"s_cselect_b32 {sr(S_T)}, {-9*128}, {sr(S_K3)}")
            a.emit(f"s_cselect_b32 {sr(S_T2)}, {sr(S_K2)}, {sr(S_WADV)}")
            a.emit(f"s_cselect_b32 {sr(S_K1)}, {-9*2560}, {sr(S_K4)}")
            a.emit(f"s_ashr_i32 {sr(S_ROT)}, {sr(S_T)}, 31")
            a.emit(f"s_add_u32 {sr(S_X)}, {sr(S_X)}, {sr(S_T)}")
            a.emit(f"s_addc_u32 {sr(S_X+1)}, {sr(S_X+1)}, {sr(S_ROT)}")
            a.emit(f"s_add_u32 {sr(S_WB)}, {sr(S_WB)}, {sr(S_T2)}")
            a.emit(f"s_addc_u32 {sr(S_WB+1)}, {sr(S_WB+1)}, {sr(S_ROT)}")
        for n in range(5):
            a.emit(f"s_add_u32 m0, {sr(S_M0W)}, {buf*STAGE + n*1024}")
            a.emit(f"global_load_lds_dwordx4 {vr(V_LO+4+n)}, {sr(S_WB,2)}")
        for n in range(4):
            a.emit(f"s_add_u32 m0, {sr(S_M0X)}, {buf*STAGE + n*1024}")
            a.emit(f"global_load_lds_dwordx4 {vr(V_LO+n)}, {sr(S_X,2)}")
        if extra:
            if c > 0:
                a.emit(f"s_add_u32 {sr(S_EX)}, {sr(S_EX)}, {sr(S_K1)}")
                a.emit(f"s_addc_u32 {sr(S_EX+1)}, {sr(S_EX+1)}, {sr(S_ROT)}")
            a.emit(f"s_add_u32 m0, {sr(S_M0E)}, {buf*2560}")
            a.emit(f"s_mov_b64 exec, {sr(S_EXM,2)}")
            a.emit(f"global_load_lds_dwordx4 {vr(V_LO+9)}, {sr(S_EX,2)}")
            a.emit("s_mov_b64 exec, -1")
    def loader(extra, tag):
        n = 10 if extra else 9
        a.emit(f"s_mov_b32 {sr(S_K3)}, 128")
        a.emit(f"s_mov_b32 {sr(S_K4)}, 2560")
        issued = []
        for c in (0, 1): chunk(c, extra); issued.append(c)
        for c in range(10):
            after = len([x for x in issued if x > c])
            a.emit(f"s_waitcnt vmcnt({n*after})")
            a.emit("s_barrier")
            if c + 2 < 10: chunk(c + 2, extra); issued.append(c + 2)
        a.emit("s_barrier")
        a.emit(f"s_branch {name}_ldend")
    a.emit(f"s_cmp_eq_u32 {sr(S_ROLE)}, 1")
    a.emit(f"s_cbranch_scc1 {name}_ldx")
    a.emit(f"s_cmp_eq_u32 {sr(S_ROLE)}, 2")
    a.emit(f"s_cbranch_scc1 {name}_ldx")
    a.emit(f"s_cmp_lt_u32 {sr(S_ROLE)}, 3")
    a.emit(f"s_cbranch_scc1 {name}_ldp")
    a.emit(f"s_cmp_eq_u32 {sr(S_ROLE)}, 3")
    a.emit(f"s_mov_b32 {sr(S_T)}, 3200")
    a.emit(f"s_cselect_b32 {sr(S_T)}, 6400, {sr(S_T)}")
    a.emit(f"s_mul_i32 {sr(S_T)}, {sr(S_T)}, {sr(S_G)}")
    for rep in range(2):
        a.emit(f"s_lshl_b32 {sr(S_T2)}, {sr(S_W)}, 10")
        a.emit(f"s_add_u32 {sr(S_T2)}, {sr(S_T2)}, {rep*4096}")
        a.emit(f"s_add_u32 m0, {sr(S_T2)}, {EXTRA}")
        a.emit(f"s_add_u32 {sr(S_T2)}, {sr(S_T2)}, {sr(S_T)}")
        a.emit(f"v_add_u32 {vr(V_T0)}, {sr(S_T2)}, {vr(V_L16)}")
        a.emit(f"v_min_u32 {vr(V_T0)}, 25584, {vr(V_T0)}")
        a.emit(f"global_load_lds_dwordx4 {vr(V_T0)}, s[56:57]")
    a.label(f"{name}_ldp")
    loader(False, "p")
    a.label(f"{name}_ldx")
    loader(True, "x")
    a.label(f"{name}_ldend")
    a.emit("s_load_dwordx2 s[44:45], s[0:1], 32")
    a.emit("s_load_dwordx2 s[46:47], s[0:1], 64")
    a.emit(f"s_lshr_b32 {sr(S_T)}, s2, 3")
    a.emit(f"s_mul_i32 {sr(S_T)}, {sr(S_T)}, 200")
    a.emit(f"s_lshl_b32 {sr(S_T2)}, {sr(S_W)}, 6")
    a.emit(f"s_add_u32 {sr(S_T)}, {sr(S_T)}, {sr(S_T2)}")
    a.emit(f"v_add_u32 {vr(V_T0)}, {sr(S_T)}, {vr(V_LANE)}")
    a.emit(f"v_min_u32 {vr(V_T0)}, 6399, {vr(V_T0)}")
    a.emit(f"v_lshlrev_b32 {vr(V_T0)}, 7, {vr(V_T0)}")
    a.emit(f"s_and_b32 {sr(S_T)}, s2, 4")
    a.emit(f"s_cmp_eq_u32 {sr(S_T)}, 0")
    a.emit("s_waitcnt lgkmcnt(0)")
    a.emit(f"s_cselect_b32 s44, s44, s46")
    a.emit(f"s_cselect_b32 s45, s45, s47")
    a.emit(f"global_load_dword {vr(V_T1)}, {vr(V_T0)}, s[44:45]")
    a.emit(f"s_cmp_eq_u32 {sr(S_ROLE)}, 4")
    a.emit(f"s_cbranch_scc0 {name}_fin")
    a.emit("s_barrier"); a.emit("s_barrier")
    a.label(f"{name}_fin")
```

```python
from asm import *
from layout import *
from common import *

O_ = 0; Q1_ = 64; Q2_ = 80; SH_ = 88; S_ = 96; P_ = 128; KV_ = 144
M_ = 208
V_L16 = M_; V_LANE = M_ + 1
V_T0 = M_ + 2; V_T1 = M_ + 3; V_T2 = M_ + 4; V_T3 = M_ + 5
V_KM = M_ + 6
V_AD = M_ + 7
V_WR = M_ + 10; V_RD = M_ + 11
V_AB = M_ + 12
V_RC = M_ + 15
V_Z = M_ + 16
S_KV = 6; S_Q = 8
S_W = 10; S_QB = 11; S_KQ = 12; S_CNT = 13; S_T = 14; S_T2 = 15
S_MLO = 16; S_MHI = 18
S_RB = 20; S_HG = 21; S_C60 = 22; S_YIELD = 23
S_OA = 24; S_HEAD = 26
S_KV0 = 28; S_LO = 30
S_PB = 32; S_OB = 36; S_PQ = 38; S_DM = 40; S_T3 = 42; S_T4 = 43; S_HB = 44
S_KR = 46
S_RC = 48
IMG_A = 122880; IMG_B = IMG_A + 10240
LD = " sc1"

def kvload(a, b):
    base = KV_ + 16 * b
    for f in range(4):
        a.emit(f"global_load_dwordx4 {vr(base+4*f,4)}, {vr(V_L16)}, {sr(S_KV,2)} offset:{1024*f}{LD}")
def kvadv(a):
    a.emit(f"s_add_u32 {sr(S_KV)}, {sr(S_KV)}, 4096")
    a.emit(f"s_addc_u32 {sr(S_KV+1)}, {sr(S_KV+1)}, 0")
def qk(a, Sd, Kb, j):
    return [lambda: mfma(a, Sd, Kb, Q1_ + 4 * j, None),
            lambda: mfma8(a, Sd, Kb + 4 + 2 * (j & 1), Q2_ + 2 * j, Sd)]

def slot(a, n, name, yield_at):
    j = n & 3
    nn = n + 1; tn = (nn >> 2) & 3; jn = nn & 3
    pp = n - 1; tp = (pp >> 2) & 3; jp = pp & 3
    Sc = S_ + 16 * (n & 1); Sn = S_ + 16 * (nn & 1)
    Pc = P_ + 8 * (n & 1); Pp = P_ + 8 * (pp & 1)
    Kn = KV_ + 16 * tn; Vp = KV_ + 16 * tp + 8
    ms = qk(a, Sn, Kn, jn) + [
          lambda: mfma(a, O_ + 16 * jp, Vp, Pp, O_ + 16 * jp),
          lambda: mfma(a, O_ + 16 * jp, Vp + 4, Pp + 4, O_ + 16 * jp)]
    for g in range(4):
        ms[g]()
        for i in range(4):
            a.emit(f"v_exp_f32 {vr(Sc+4*g+i)}, {vr(Sc+4*g+i)}")
        a.emit(f"v_cvt_pk_bf16_f32 {vr(Pc+2*g)}, {vr(Sc+4*g)}, {vr(Sc+4*g+1)}")
        a.emit(f"v_cvt_pk_bf16_f32 {vr(Pc+2*g+1)}, {vr(Sc+4*g+2)}, {vr(Sc+4*g+3)}")
    if j == 2:
        t = n >> 2
        a.emit("s_waitcnt vmcnt(4)")
        kvadv(a)
        if n == 2:
            a.emit(f"s_cmp_eq_u32 {sr(S_CNT)}, 1")
            a.emit(f"s_cbranch_scc0 {name}_norc")
            a.emit(f"global_load_dword {vr(V_RC)}, {vr(V_T3)}, {sr(S_WS,2)} sc1")
            a.label(f"{name}_norc")
        if n == yield_at:
            a.emit(f"s_cmp_eq_u32 {sr(S_CNT)}, {sr(S_YIELD)}")
            a.emit(f"s_cbranch_scc0 {name}_noyield")
            a.emit("s_setprio 0")
            a.label(f"{name}_noyield")
        if n == 14:
            a.emit(f"s_sub_u32 {sr(S_CNT)}, {sr(S_CNT)}, 1")
            a.emit(f"s_cmp_lg_u32 {sr(S_CNT)}, 0")
        kvload(a, (t + 3) & 3)

def build_q2(a, T0regs, T1regs):
    for j in range(4):
        p = j >> 1
        m = S_MLO if (j & 1) == 0 else S_MHI
        a.emit(f"v_cndmask_b32 {vr(Q2_+2*j)}, {T0regs[j]}, {vr(SH_+4*p)}, {sr(m,2)}")
        a.emit(f"v_cndmask_b32 {vr(Q2_+2*j+1)}, {T1regs[j]}, {vr(SH_+4*p+1)}, {sr(m,2)}")

def img_addrs(a, dst, s_hl, base):
    def sa(dsts):
        a.emit(f"s_lshr_b32 {sr(dsts)}, {sr(S_T3)}, 2")
        a.emit(f"s_lshl_b32 {sr(dsts)}, {sr(dsts)}, 10")
        a.emit(f"s_bfe_u32 {sr(S_T4)}, {sr(S_T3)}, 0x10001")
        a.emit(f"s_lshl_b32 {sr(S_T4)}, {sr(S_T4)}, 9")
        a.emit(f"s_add_u32 {sr(dsts)}, {sr(dsts)}, {sr(S_T4)}")
        a.emit(f"s_and_b32 {sr(S_T4)}, {sr(S_T3)}, 1")
        a.emit(f"s_lshl_b32 {sr(S_T4)}, {sr(S_T4)}, 3")
        a.emit(f"s_add_u32 {sr(dsts)}, {sr(dsts)}, {sr(S_T4)}")
    a.emit(f"s_mul_i32 {sr(S_T3)}, {sr(s_hl)}, 5")
    for k in range(3):
        sa(S_T)
        a.emit(f"s_add_u32 {sr(S_T3)}, {sr(S_T3)}, 1")
        sa(S_T2)
        a.emit(f"s_add_u32 {sr(S_T3)}, {sr(S_T3)}, 1")
        a.emit(f"s_sub_u32 {sr(S_T2)}, {sr(S_T2)}, {sr(S_T)}")
        a.emit(f"s_add_u32 {sr(S_T)}, {sr(S_T)}, {base}")
        a.emit(f"v_add_u32 {vr(dst+k)}, {sr(S_T)}, {vr(V_T1)}")
        if k < 2: a.emit(f"v_mad_u32_u24 {vr(dst+k)}, {vr(V_T0)}, {sr(S_T2)}, {vr(dst+k)}")

def finalize(a, R, addr, eps=None):
    a.emit(f"v_mov_b32 {vr(V_T2)}, {vr(R+8)}")
    a.emit(f"v_mov_b32 {vr(V_T3)}, {vr(R+8)}")
    a.emit(f"v_permlane32_swap_b32 {vr(V_T2)}, {vr(V_T3)}")
    if eps is not None:
        a.emit(f"v_add_f32 {vr(V_T3)}, {eps}, {vr(V_T3)}")
    a.emit(f"v_rcp_f32 {vr(V_T2)}, {vr(V_T3)}")
    for i in range(6):
        a.emit(f"v_pk_mul_f32 {vr(R+2*i,2)}, {vr(R+2*i,2)}, {vr(V_T2,2)} op_sel_hi:[1,0]")
    for i in range(6):
        a.emit(f"v_cvt_pk_bf16_f32 {vr(R+12+i)}, {vr(R+2*i)}, {vr(R+2*i+1)}")
    a.emit(f"ds_write_b64 {vr(addr)}, {vr(R+12,2)}")
    a.emit(f"ds_write_b64 {vr(addr+1)}, {vr(R+14,2)}")
    a.emit(f"s_mov_b64 exec, {sr(S_MLO,2)}")
    a.emit(f"ds_write_b64 {vr(addr+2)}, {vr(R+16,2)}")
    a.emit("s_mov_b64 exec, -1")

def phase2(a, prof, yield_at=10):
    name = "P2"
    a.emit("s_setprio 3")
    a.emit(f"v_mov_b32 {vr(V_LANE)}, {vr(V_LANE_G)}")
    a.emit(f"v_mov_b32 {vr(V_L16)}, {vr(V_L16_G)}")
    a.emit(f"s_mov_b32 {sr(S_W)}, {sr(S_WG)}")
    a.emit(f"s_and_b32 {sr(S_QB)}, {sr(S_W)}, 1")
    a.emit(f"s_lshr_b32 {sr(S_KQ)}, {sr(S_W)}, 1")
    a.emit(f"s_lshr_b32 {sr(S_RB)}, s2, 2")
    a.emit(f"s_and_b32 {sr(S_HG)}, s2, 3")
    a.emit(f"s_lshl_b32 {sr(S_HEAD)}, {sr(S_HG)}, 3")
    a.emit(f"s_lshl_b32 {sr(S_T)}, {sr(S_QB)}, 2")
    a.emit(f"s_add_u32 {sr(S_HEAD)}, {sr(S_HEAD)}, {sr(S_T)}")
    a.emit(f"s_lshl_b32 {sr(S_T)}, {sr(S_RB)}, 4")
    a.emit(f"s_lshr_b32 {sr(S_T2)}, {sr(S_HEAD)}, 1")
    a.emit(f"s_add_u32 {sr(S_T)}, {sr(S_T)}, {sr(S_T2)}")
    a.emit(f"s_mul_i32 {sr(S_T)}, {sr(S_T)}, 3072")
    a.emit(f"s_add_u32 {sr(S_T)}, {sr(S_T)}, {WS_QF}")
    a.emit(f"s_lshl_b32 {sr(S_T2)}, {sr(S_KQ)}, 16")
    a.emit(f"s_add_u32 {sr(S_T2)}, {sr(S_T2)}, {WS_KV}")
    a.emit(f"v_lshlrev_b32 {vr(V_T1)}, 2, {vr(V_LANE)}")
    a.emit(f"v_add_u32 {vr(V_T2)}, 3072, {vr(V_L16)}")
    a.emit(f"s_add_u32 {sr(S_Q)}, {sr(S_WS)}, {sr(S_T)}")
    a.emit(f"s_addc_u32 {sr(S_Q+1)}, {sr(S_WS+1)}, 0")
    a.emit(f"s_add_u32 {sr(S_KV)}, {sr(S_WS)}, {sr(S_T2)}")
    a.emit(f"s_addc_u32 {sr(S_KV+1)}, {sr(S_WS+1)}, 0")
    a.emit(f"s_add_u32 {sr(S_OA)}, {sr(S_WS)}, {WS_KMAX}")
    a.emit(f"s_addc_u32 {sr(S_OA+1)}, {sr(S_WS+1)}, 0")
    return name

def phase2_after_barrier(a, prof, yield_at=10):
    name = "P2"
    a.emit(f"global_load_dword {vr(V_KM)}, {vr(V_T1)}, {sr(S_OA,2)}{LD}")
    for p in range(2):
        av = V_L16 if p == 0 else V_T2
        a.emit(f"global_load_dwordx4 {vr(SH_+4*p,4)}, {vr(av)}, {sr(S_Q,2)} offset:2048{LD}")
        a.emit(f"global_load_dwordx4 {vr(Q1_+8*p,4)}, {vr(av)}, {sr(S_Q,2)}{LD}")
        a.emit(f"global_load_dwordx4 {vr(Q1_+8*p+4,4)}, {vr(av)}, {sr(S_Q,2)} offset:1024{LD}")
    kvload(a, 0); kvadv(a); kvload(a, 1); kvadv(a); kvload(a, 2)
    KR = O_
    a.emit(f"s_cmp_eq_u32 {sr(S_W)}, 7")
    a.emit(f"s_cbranch_scc0 {name}_nokr")
    a.emit(f"s_and_b32 {sr(S_T)}, s2, 31")
    a.emit(f"s_mul_i32 {sr(S_T)}, {sr(S_T)}, 5120")
    a.emit(f"s_add_u32 {sr(S_T)}, {sr(S_T)}, {WS_KVP}")
    a.emit(f"s_add_u32 {sr(S_PB)}, {sr(S_WS)}, {sr(S_T)}")
    a.emit(f"s_addc_u32 {sr(S_PB+1)}, {sr(S_WS+1)}, 0")
    a.emit(f"s_lshr_b32 {sr(S_T)}, s2, 5")
    a.emit(f"s_lshl_b32 {sr(S_T)}, {sr(S_T)}, 3")
    a.emit(f"v_and_b32 {vr(V_T0)}, 7, {vr(V_LANE)}")
    a.emit(f"v_add_u32 {vr(V_T0)}, {sr(S_T)}, {vr(V_T0)}")
    a.emit(f"v_lshrrev_b32 {vr(V_T3)}, 3, {vr(V_LANE)}")
    a.emit(f"v_lshlrev_b32 {vr(V_RC)}, 10, {vr(V_T3)}")
    a.emit(f"v_lshl_add_u32 {vr(V_RC)}, {vr(V_T0)}, 4, {vr(V_RC)}")
    a.emit(f"s_mov_b32 exec_lo, -1")
    a.emit(f"s_mov_b32 exec_hi, 0xff")
    for rb in range(16):
        a.emit(f"global_load_dwordx4 {vr(KR+4*rb,4)}, {vr(V_RC)}, {sr(S_PB,2)}{LD}")
        if rb < 15:
            a.emit(f"s_add_u32 {sr(S_PB)}, {sr(S_PB)}, {32*5120}")
            a.emit(f"s_addc_u32 {sr(S_PB+1)}, {sr(S_PB+1)}, 0")
    a.emit("s_mov_b64 exec, -1")
    a.emit(f"v_and_b32 {vr(V_AB)}, 1, {vr(V_T3)}")
    a.emit(f"v_lshlrev_b32 {vr(V_AB)}, 3, {vr(V_AB)}")
    a.emit(f"v_lshl_add_u32 {vr(V_AB)}, {vr(V_T0)}, 4, {vr(V_AB)}")
    a.emit(f"v_lshrrev_b32 {vr(V_AB+1)}, 1, {vr(V_T3)}")
    a.emit(f"v_lshl_add_u32 {vr(V_AB)}, {vr(V_AB+1)}, 10, {vr(V_AB)}")
    a.emit(f"v_lshlrev_b32 {vr(V_AB+1)}, 3, {vr(V_T0)}")
    a.emit(f"v_add_u32 {vr(V_AB+1)}, 2048, {vr(V_AB+1)}")
    a.emit(f"v_cmp_eq_u32 vcc, 4, {vr(V_T3)}")
    a.emit(f"v_cndmask_b32 {vr(V_AB)}, {vr(V_AB)}, {vr(V_AB+1)}, vcc")
    a.emit("s_waitcnt vmcnt(0)")
    for st in (8, 4, 2, 1):
        for rb in range(st):
            a.emit(f"v_pk_add_f32 {vr(KR+4*rb,2)}, {vr(KR+4*rb,2)}, {vr(KR+4*(rb+st),2)}")
            a.emit(f"v_pk_add_f32 {vr(KR+4*rb+2,2)}, {vr(KR+4*rb+2,2)}, {vr(KR+4*(rb+st)+2,2)}")
    a.emit(f"v_cvt_pk_bf16_f32 {vr(KR)}, {vr(KR)}, {vr(KR+1)}")
    a.emit(f"v_cvt_pk_bf16_f32 {vr(KR+1)}, {vr(KR+2)}, {vr(KR+3)}")
    a.emit(f"s_and_b32 {sr(S_T)}, s2, 31")
    a.emit(f"s_mul_i32 {sr(S_T2)}, {sr(S_T)}, 2560")
    a.emit(f"s_add_u32 {sr(S_T2)}, {sr(S_T2)}, {WS_KVR}")
    a.emit(f"v_add_u32 {vr(V_AB)}, {sr(S_T2)}, {vr(V_AB)}")
    a.emit(f"s_mov_b32 exec_lo, -1")
    a.emit(f"s_mov_b32 exec_hi, 0xff")
    a.emit(f"global_store_dwordx2 {vr(V_AB)}, {vr(KR,2)}, {sr(S_WS,2)} sc1")
    a.emit("s_mov_b64 exec, -1")
    a.emit(f"s_lshl_b32 {sr(S_T)}, {sr(S_T)}, 7")
    a.emit(f"s_add_u32 {sr(S_T)}, {sr(S_T)}, {WS_CNT + 4096}")
    a.emit(f"v_mov_b32 {vr(V_AB)}, {sr(S_T)}")
    a.emit(f"v_mov_b32 {vr(V_AB+1)}, 1")
    a.emit("s_waitcnt vmcnt(0)")
    a.emit("s_mov_b64 exec, 1")
    a.emit(f"global_atomic_add {vr(V_AB)}, {vr(V_AB+1)}, {sr(S_WS,2)} sc1")
    a.emit("s_mov_b64 exec, -1")
    a.label(f"{name}_nokr")
    a.emit(f"s_mov_b32 {sr(S_MLO)}, -1")
    a.emit(f"s_mov_b32 {sr(S_MLO+1)}, 0")
    a.emit(f"s_mov_b32 {sr(S_MHI)}, 0")
    a.emit(f"s_mov_b32 {sr(S_MHI+1)}, -1")
    a.emit(f"s_mov_b32 {sr(S_C60)}, 0x42700000")
    a.emit(f"s_cmp_lt_u32 {sr(S_W)}, 4")
    a.emit(f"s_cselect_b32 {sr(S_YIELD)}, 1, 99")
    for i in range(4): a.emit(f"v_mov_b32 {vr(V_Z+i)}, 0")
    for i in range(8): a.emit(f"v_mov_b32 {vr(P_+8+i)}, 0")
    for j in range(4): mfma(a, O_ + 16 * j, V_Z, V_Z, None)
    for i in range(8): a.emit(f"v_mov_b32 {vr(KV_+48+8+i)}, 0")
    a.emit(f"s_mul_i32 {sr(S_T)}, {sr(S_QB)}, {12*3072}")
    a.emit(f"v_add_u32 {vr(V_WR)}, {sr(S_T)}, {vr(V_L16)}")
    a.emit(f"s_mul_i32 {sr(S_T2)}, {sr(S_KQ)}, {3*3072}")
    a.emit(f"s_add_u32 {sr(S_T)}, {sr(S_T)}, {sr(S_T2)}")
    a.emit(f"v_add_u32 {vr(V_RD)}, {sr(S_T)}, {vr(V_L16)}")
    a.emit(f"v_lshrrev_b32 {vr(V_T0)}, 5, {vr(V_LANE)}")
    a.emit(f"v_and_b32 {vr(V_T1)}, 31, {vr(V_LANE)}")
    a.emit(f"v_lshlrev_b32 {vr(V_T1)}, 4, {vr(V_T1)}")
    a.emit(f"s_lshl_b32 {sr(S_HB)}, {sr(S_QB)}, 2")
    a.emit(f"s_add_u32 {sr(S_HB)}, {sr(S_HB)}, {sr(S_KQ)}")
    img_addrs(a, V_AD, S_HB, IMG_A)
    img_addrs(a, V_AB, S_W, IMG_B)
    a.emit(f"s_lshl_b32 {sr(S_T)}, {sr(S_RB)}, 4")
    a.emit(f"s_lshl_b32 {sr(S_T2)}, {sr(S_HG)}, 2")
    a.emit(f"s_add_u32 {sr(S_T)}, {sr(S_T)}, {sr(S_T2)}")
    a.emit(f"s_add_u32 {sr(S_T)}, {sr(S_T)}, {sr(S_KQ)}")
    a.emit(f"s_mul_i32 {sr(S_T)}, {sr(S_T)}, 5120")
    a.emit(f"s_add_u32 {sr(S_T)}, {sr(S_T)}, {WS_PHIQ}")
    a.emit(f"s_add_u32 {sr(S_PQ)}, {sr(S_WS)}, {sr(S_T)}")
    a.emit(f"s_addc_u32 {sr(S_PQ+1)}, {sr(S_WS+1)}, 0")
    a.emit(f"s_lshl_b32 {sr(S_T)}, {sr(S_HG)}, 3")
    a.emit(f"s_add_u32 {sr(S_T)}, {sr(S_T)}, {sr(S_W)}")
    a.emit(f"s_mul_i32 {sr(S_T2)}, {sr(S_T)}, 2560")
    a.emit(f"s_add_u32 {sr(S_T2)}, {sr(S_T2)}, {WS_KVR}")
    a.emit(f"s_add_u32 {sr(S_KR)}, {sr(S_WS)}, {sr(S_T2)}")
    a.emit(f"s_addc_u32 {sr(S_KR+1)}, {sr(S_WS+1)}, 0")
    a.emit(f"s_lshl_b32 {sr(S_RC)}, {sr(S_T)}, 7")
    a.emit(f"s_add_u32 {sr(S_RC)}, {sr(S_RC)}, {WS_CNT + 4096}")
    a.emit(f"s_mul_i32 {sr(S_T)}, {sr(S_RB)}, 40")
    a.emit(f"s_mul_i32 {sr(S_T2)}, {sr(S_HG)}, 10")
    a.emit(f"s_add_u32 {sr(S_T)}, {sr(S_T)}, {sr(S_T2)}")
    a.emit(f"s_lshl_b32 {sr(S_T)}, {sr(S_T)}, 10")
    a.emit(f"s_add_u32 {sr(S_T)}, {sr(S_T)}, {WS_OA}")
    a.emit("s_waitcnt vmcnt(18)")
    for r in (8, 4, 2, 1):
        a.emit(f"v_max_f32_dpp {vr(V_KM)}, {vr(V_KM)}, {vr(V_KM)} row_ror:{r} row_mask:0xf bank_mask:0xf")
    a.emit(f"v_readlane_b32 {sr(S_T3)}, {vr(V_KM)}, 0")
    a.emit(f"v_readlane_b32 {sr(S_T2)}, {vr(V_KM)}, 16")
    a.emit(f"v_readlane_b32 {sr(S_LO)}, {vr(V_KM)}, 32")
    a.emit(f"v_readlane_b32 {sr(S_LO+1)}, {vr(V_KM)}, 48")
    a.emit(f"s_max_u32 {sr(S_T3)}, {sr(S_T3)}, {sr(S_T2)}")
    a.emit(f"s_max_u32 {sr(S_LO)}, {sr(S_LO)}, {sr(S_LO+1)}")
    a.emit(f"s_max_u32 {sr(S_T3)}, {sr(S_T3)}, {sr(S_LO)}")
    a.emit(f"v_sqrt_f32 {vr(V_KM)}, {sr(S_T3)}")
    a.emit(f"s_add_u32 {sr(S_OA)}, {sr(S_WS)}, {sr(S_T)}")
    a.emit(f"s_addc_u32 {sr(S_OA+1)}, {sr(S_WS+1)}, 0")
    a.emit(f"v_mul_f32 {vr(V_KM)}, 0x3f828f5c, {vr(V_KM)}")
    a.emit(f"v_mov_b32 {vr(V_T3)}, {sr(S_RC)}")
    a.emit("s_waitcnt vmcnt(14)")
    for p in range(2):
        a.emit(f"v_fma_f32 {vr(SH_+4*p+3)}, -{vr(SH_+4*p+2)}, {vr(V_KM)}, {sr(S_C60)}")
    for p in range(2):
        a.emit(f"v_cvt_pk_bf16_f32 {vr(SH_+4*p+3)}, {vr(SH_+4*p+3)}, 0")
    build_q2(a, [vr(SH_ + 4 * (j >> 1) + 3) for j in range(4)], ["0"] * 4)
    a.emit("s_waitcnt vmcnt(8)")
    for m in qk(a, S_, KV_, 0): m()
    stamp(a, 4, prof)
    if prof: a.emit("s_waitcnt lgkmcnt(0)")
    a.emit(f"s_mov_b32 {sr(S_CNT)}, 4")
    a.emit(f"s_cmp_lt_u32 {sr(S_W)}, 4")
    a.emit(f"s_cbranch_scc1 {name}_p2")
    a.emit("s_setprio 1")
    a.emit(f"s_branch {name}_p3")
    a.label(f"{name}_p2")
    a.emit("s_setprio 2")
    a.label(f"{name}_p3")
    a.emit("s_nop 7")
    a.emit("s_nop 7")
    a(".p2align 6")
    a.label(f"{name}_loop")
    for n in range(16):
        slot(a, n, name, yield_at)
    a.emit(f"s_cbranch_scc1 {name}_loop")
    stamp(a, 5, prof)
    mfma(a, O_ + 48, KV_ + 48 + 8, P_ + 8, O_ + 48)
    mfma(a, O_ + 48, KV_ + 48 + 12, P_ + 12, O_ + 48)
    PQ = KV_; AFR = KV_ + 16
    a.emit("s_waitcnt vmcnt(0)")
    a.label(f"{name}_rc")
    a.emit(f"v_readfirstlane_b32 {sr(S_T)}, {vr(V_RC)}")
    a.emit(f"s_cmp_ge_u32 {sr(S_T)}, 8")
    a.emit(f"s_cbranch_scc1 {name}_rcok")
    a.emit(f"s_mov_b32 s60, {SPIN}")
    a.label(f"{name}_rcspin")
    a.emit(f"global_load_dword {vr(V_RC)}, {vr(V_T3)}, {sr(S_WS,2)} sc1")
    a.emit("s_waitcnt vmcnt(0)")
    a.emit(f"v_readfirstlane_b32 {sr(S_T)}, {vr(V_RC)}")
    a.emit("s_sub_u32 s60, s60, 1")
    a.emit("s_cmp_eq_u32 s60, 0")
    a.emit(f"s_cbranch_scc1 {name}_rcok")
    a.emit(f"s_cmp_lt_u32 {sr(S_T)}, 8")
    a.emit(f"s_cbranch_scc1 {name}_rcspin")
    a.label(f"{name}_rcok")
    a.emit(f"s_lshl_b32 {sr(S_T)}, {sr(S_QB)}, 11")
    a.emit(f"v_add_u32 {vr(V_T0)}, {sr(S_T)}, {vr(V_L16)}")
    a.emit(f"s_lshl_b32 {sr(S_T)}, {sr(S_QB)}, 3")
    a.emit(f"s_add_u32 {sr(S_T)}, {sr(S_T)}, 4096")
    a.emit(f"v_add_u32 {vr(V_T1)}, {sr(S_T)}, {vr(V_L16)}")
    a.emit(f"v_lshlrev_b32 {vr(V_T2)}, 3, {vr(V_LANE)}")
    a.emit(f"global_load_dwordx4 {vr(PQ,4)}, {vr(V_T0)}, {sr(S_PQ,2)}{LD}")
    a.emit(f"global_load_dwordx4 {vr(PQ+4,4)}, {vr(V_T0)}, {sr(S_PQ,2)} offset:1024{LD}")
    a.emit(f"global_load_dwordx2 {vr(PQ+8,2)}, {vr(V_T1)}, {sr(S_PQ,2)}{LD}")
    a.emit(f"global_load_dwordx4 {vr(AFR,4)}, {vr(V_L16)}, {sr(S_KR,2)}{LD}")
    a.emit(f"global_load_dwordx4 {vr(AFR+4,4)}, {vr(V_L16)}, {sr(S_KR,2)} offset:1024{LD}")
    a.emit(f"global_load_dwordx2 {vr(AFR+8,2)}, {vr(V_T2)}, {sr(S_KR,2)} offset:2048{LD}")
    R = S_
    for kq in range(4):
        if kq < 3:
            a.emit(f"s_cmp_lg_u32 {sr(S_KQ)}, {kq}")
            a.emit(f"s_cbranch_scc1 {name}_red{kq+1}")
        order = [j for j in (0, 1, 2, 3) if j != kq]
        for j in order:
            src = (kq - j - 1) & 3
            if j == 3: a.emit("s_nop 7")
            for f in range(3):
                a.emit(f"ds_write_b128 {vr(V_WR)}, {vr(O_+16*j+4*f,4)} offset:{(j*3+src)*3072+f*1024}")
        a.emit("s_waitcnt lgkmcnt(0)")
        a.emit("s_barrier")
        for s in range(3):
            for f in range(3):
                a.emit(f"ds_read_b128 {vr(R+12*s+4*f,4)}, {vr(V_RD)} offset:{s*3072+f*1024}")
        if kq == 3: a.emit("s_nop 3")
        a.emit("s_waitcnt lgkmcnt(6)")
        for i in range(6):
            a.emit(f"v_pk_add_f32 {vr(R+2*i,2)}, {vr(R+2*i,2)}, {vr(O_+16*kq+2*i,2)}")
        if kq < 3:
            a.emit(f"s_branch {name}_redj")
            a.label(f"{name}_red{kq+1}")
    a.label(f"{name}_redj")
    D = O_ + 32
    a.emit(f"v_mov_b32 {vr(AFR+10)}, 0"); a.emit(f"v_mov_b32 {vr(AFR+11)}, 0")
    a.emit(f"v_mov_b32 {vr(PQ+10)}, 0"); a.emit(f"v_mov_b32 {vr(PQ+11)}, 0")
    a.emit("s_waitcnt lgkmcnt(0)")
    for i in range(6):
        a.emit(f"v_pk_add_f32 {vr(R+12+2*i,2)}, {vr(R+12+2*i,2)}, {vr(R+24+2*i,2)}")
    a.emit("s_waitcnt vmcnt(0)")
    mfma(a, D, AFR, PQ, None)
    mfma(a, D, AFR + 4, PQ + 4, D)
    mfma(a, D, AFR + 8, PQ + 8, D)
    for i in (4, 5, 0, 1, 2, 3):
        a.emit(f"v_pk_add_f32 {vr(R+2*i,2)}, {vr(R+2*i,2)}, {vr(R+12+2*i,2)}")
    finalize(a, R, V_AD)
    a.emit(f"s_mov_b32 {sr(S_T)}, 0x21800000")
    a.emit(f"s_mov_b32 {sr(S_T2)}, 0x7b800000")
    a.emit(f"v_cmp_le_f32 vcc, {sr(S_T)}, {vr(V_T3)}")
    a.emit(f"v_cmp_ge_f32 {sr(S_LO,2)}, {sr(S_T2)}, {vr(V_T3)}")
    a.emit("s_nop 1")
    a.emit(f"s_and_b64 vcc, vcc, {sr(S_LO,2)}")
    a.emit("s_cmp_eq_u64 vcc, -1")
    a.emit(f"s_cbranch_scc0 {name}_fb")
    a.label(f"{name}_afterA")
    finalize(a, D, V_AB, eps="0x358637bd")
    a.emit("s_waitcnt lgkmcnt(0)")
    a.emit("s_barrier")
    for rep in range(3):
        if rep == 2:
            a.emit(f"s_cmp_ge_u32 {sr(S_W)}, 4")
            a.emit(f"s_cbranch_scc1 {name}_stdone")
        a.emit(f"s_add_u32 {sr(S_T)}, {sr(S_W)}, {8*rep}")
        a.emit(f"s_lshl_b32 {sr(S_T2)}, {sr(S_T)}, 10")
        a.emit(f"s_add_u32 {sr(S_T3)}, {sr(S_T2)}, {IMG_A}")
        a.emit(f"v_add_u32 {vr(V_T0)}, {sr(S_T3)}, {vr(V_L16)}")
        a.emit(f"ds_read_b128 {vr(R+4*rep,4)}, {vr(V_T0)}")
        a.emit(f"s_cmp_ge_u32 {sr(S_T)}, 10")
        a.emit(f"s_cselect_b32 {sr(S_T3)}, {WS_OB - WS_OA - 10240}, 0")
        a.emit(f"s_add_u32 {sr(S_T2)}, {sr(S_T2)}, {sr(S_T3)}")
        a.emit(f"v_add_u32 {vr(V_AD+rep)}, {sr(S_T2)}, {vr(V_L16)}")
    a.emit("s_waitcnt lgkmcnt(0)")
    a.emit(f"global_store_dwordx4 {vr(V_AD+2)}, {vr(R+8,4)}, {sr(S_OA,2)} sc1")
    a.label(f"{name}_stdone")
    a.emit("s_waitcnt lgkmcnt(0)")
    a.emit(f"global_store_dwordx4 {vr(V_AD)}, {vr(R,4)}, {sr(S_OA,2)} sc1")
    a.emit(f"global_store_dwordx4 {vr(V_AD+1)}, {vr(R+4,4)}, {sr(S_OA,2)} sc1")
    a.emit(f"s_branch {name}_done")
    a.label(f"{name}_fb")
    FQ1 = S_ + 24; FQ2 = S_ + 28; FSH = S_ + 30
    FO = P_; FS = KV_ + 32; FK = KV_ + 48; FP = O_
    FA = V_WR; FM = V_RD
    FK = O_ + 8
    for kq in range(4):
        if kq < 3:
            a.emit(f"s_cmp_lg_u32 {sr(S_KQ)}, {kq}")
            a.emit(f"s_cbranch_scc1 {name}_fq{kq+1}")
        for i in range(4): a.emit(f"v_mov_b32 {vr(FQ1+i)}, {vr(Q1_+4*kq+i)}")
        for i in range(2): a.emit(f"v_mov_b32 {vr(FSH+i)}, {vr(SH_+4*(kq>>1)+i)}")
        if kq < 3:
            a.emit(f"s_branch {name}_fqj")
            a.label(f"{name}_fq{kq+1}")
    a.label(f"{name}_fqj")
    a.emit(f"s_and_b32 {sr(S_T)}, {sr(S_KQ)}, 1")
    a.emit(f"s_cmp_eq_u32 {sr(S_T)}, 0")
    a.emit(f"s_cselect_b64 {sr(S_DM,2)}, {sr(S_MLO,2)}, {sr(S_MHI,2)}")
    a.emit(f"s_lshl_b32 {sr(S_T)}, {sr(S_T)}, 3")
    a.emit(f"v_add_u32 {vr(FA)}, {sr(S_T)}, {vr(V_L16)}")
    a.emit(f"s_add_u32 {sr(S_KV0)}, {sr(S_WS)}, {WS_KV}")
    a.emit(f"s_addc_u32 {sr(S_KV0+1)}, {sr(S_WS+1)}, 0")
    a.emit(f"v_cndmask_b32 {vr(FQ2)}, 0, {vr(FSH)}, {sr(S_DM,2)}")
    a.emit(f"v_cndmask_b32 {vr(FQ2+1)}, 0, {vr(FSH+1)}, {sr(S_DM,2)}")
    a.emit(f"v_mov_b32 {vr(FM)}, 0xff800000")
    for ps in range(2):
        a.emit(f"s_mov_b32 {sr(S_KV)}, {sr(S_KV0)}")
        a.emit(f"s_mov_b32 {sr(S_KV+1)}, {sr(S_KV0+1)}")
        a.emit(f"s_mov_b32 {sr(S_CNT)}, 64")
        if ps == 1:
            for i in range(16): a.emit(f"v_mov_b32 {vr(FO+i)}, 0")
        a.label(f"{name}_fl{ps}")
        a.emit(f"global_load_dwordx4 {vr(FK,4)}, {vr(V_L16)}, {sr(S_KV,2)}{LD}")
        a.emit(f"global_load_dwordx2 {vr(FK+4,2)}, {vr(FA)}, {sr(S_KV,2)} offset:1024{LD}")
        if ps == 1:
            a.emit(f"global_load_dwordx4 {vr(FK+6,4)}, {vr(V_L16)}, {sr(S_KV,2)} offset:2048{LD}")
            a.emit(f"global_load_dwordx4 {vr(FK+10,4)}, {vr(V_L16)}, {sr(S_KV,2)} offset:3072{LD}")
        kvadv(a)
        a.emit("s_waitcnt vmcnt(0)")
        mfma(a, FS, FK, FQ1, None)
        mfma8(a, FS, FK + 4, FQ2, FS)
        a.emit("s_nop 7"); a.emit("s_nop 7")
        if ps == 0:
            for i in range(8):
                a.emit(f"v_max3_f32 {vr(FM)}, {vr(FS+2*i)}, {vr(FS+2*i+1)}, {vr(FM)}")
        else:
            for i in range(16): a.emit(f"v_exp_f32 {vr(FS+i)}, {vr(FS+i)}")
            for i in range(8): a.emit(f"v_cvt_pk_bf16_f32 {vr(FP+i)}, {vr(FS+2*i)}, {vr(FS+2*i+1)}")
            mfma(a, FO, FK + 6, FP, FO)
            mfma(a, FO, FK + 10, FP + 4, FO)
            a.emit("s_nop 7"); a.emit("s_nop 7")
        a.emit(f"s_sub_u32 {sr(S_CNT)}, {sr(S_CNT)}, 1")
        a.emit(f"s_cmp_lg_u32 {sr(S_CNT)}, 0")
        a.emit(f"s_cbranch_scc1 {name}_fl{ps}")
        if ps == 0:
            t = FS; h = FS + 1; m_ = FS + 2; t0 = FS + 3; t1 = FS + 4
            a.emit(f"v_mov_b32 {vr(V_T2)}, {vr(FM)}")
            a.emit(f"v_mov_b32 {vr(V_T0)}, {vr(FM)}")
            a.emit(f"v_permlane32_swap_b32 {vr(V_T2)}, {vr(V_T0)}")
            a.emit(f"v_max_f32 {vr(FM)}, {vr(V_T2)}, {vr(V_T0)}")
            a.emit(f"v_sub_f32 {vr(t)}, 0, {vr(FM)}")
            a.emit(f"v_cvt_pk_bf16_f32 {vr(h)}, {vr(t)}, 0")
            a.emit(f"v_lshlrev_b32 {vr(h)}, 16, {vr(h)}")
            a.emit(f"v_sub_f32 {vr(t)}, {vr(t)}, {vr(h)}")
            a.emit(f"v_cvt_pk_bf16_f32 {vr(m_)}, {vr(t)}, 0")
            a.emit(f"v_lshlrev_b32 {vr(m_)}, 16, {vr(m_)}")
            a.emit(f"v_sub_f32 {vr(t)}, {vr(t)}, {vr(m_)}")
            a.emit(f"v_cvt_pk_bf16_f32 {vr(t1)}, {vr(t)}, 0")
            a.emit(f"v_cvt_pk_bf16_f32 {vr(t0)}, {vr(h)}, {vr(m_)}")
            a.emit(f"v_cndmask_b32 {vr(FQ2)}, {vr(t0)}, {vr(FSH)}, {sr(S_DM,2)}")
            a.emit(f"v_cndmask_b32 {vr(FQ2+1)}, {vr(t1)}, {vr(FSH+1)}, {sr(S_DM,2)}")
    for i in range(12): a.emit(f"v_mov_b32 {vr(R+i)}, {vr(FO+i)}")
    finalize(a, R, V_AD)
    a.emit(f"s_branch {name}_afterA")
    a.label(f"{name}_done")
```

```python
from asm import *
from layout import *
from common import *

ACC = 0; BF = 80; AF = 160
M_ = 200
V_LANE = M_; V_L16 = M_ + 1
V_T0 = M_ + 2; V_T1 = M_ + 3; V_T2 = M_ + 4; V_T3 = M_ + 5
V_AB = M_ + 6
V_OUT = M_ + 8
V_LO = M_ + 8
V_TR = M_ + 13
V_TW = M_ + 18
V_XW = M_ + 19; V_XR = M_ + 20
OPRE = 4
S_W = 10; S_T = 14; S_T2 = 15; S_PART = 11; S_RB = 12; S_CG = 13
S_WO = 16; S_O = 18; S_OUT = 20
S_RT = 22; S_KH = 23; S_M0 = 25
S_ROT = 26; S_KC = 27; S_K1 = 28; S_K2 = 29; S_SX = 30
STAGE = 20480; NBUF = 6
TA = 40960

def common_ids(a):
    a.emit(f"s_and_b32 {sr(S_T)}, s2, 7")
    a.emit(f"s_lshr_b32 {sr(S_T2)}, s2, 3")
    a.emit(f"s_lshr_b32 {sr(S_PART)}, {sr(S_T)}, 2")
    a.emit(f"s_and_b32 {sr(S_T)}, {sr(S_T)}, 3")
    a.emit(f"s_lshl_b32 {sr(S_T)}, {sr(S_T)}, 3")
    a.emit(f"s_lshr_b32 {sr(S_RB)}, {sr(S_T2)}, 2")
    a.emit(f"s_add_u32 {sr(S_RB)}, {sr(S_RB)}, {sr(S_T)}")
    a.emit(f"s_and_b32 {sr(S_CG)}, {sr(S_T2)}, 3")
    a.emit(f"s_lshr_b32 {sr(S_ROT)}, {sr(S_T2)}, 2")
    a.emit(f"s_mul_i32 {sr(S_T)}, {sr(S_CG)}, 3")
    a.emit(f"s_add_u32 {sr(S_ROT)}, {sr(S_ROT)}, {sr(S_T)}")
    a.emit(f"s_cmp_ge_u32 {sr(S_ROT)}, 10")
    a.emit(f"s_cselect_b32 {sr(S_T)}, 10, 0")
    a.emit(f"s_sub_u32 {sr(S_ROT)}, {sr(S_ROT)}, {sr(S_T)}")

def tr_base(a, dst, lane, t0, t1, rowbytes):
    a.emit(f"v_lshrrev_b32 {vr(t0)}, 5, {vr(lane)}")
    a.emit(f"v_lshlrev_b32 {vr(t0)}, 3, {vr(t0)}")
    a.emit(f"v_bfe_u32 {vr(t1)}, {vr(lane)}, 2, 2")
    a.emit(f"v_add_u32 {vr(t0)}, {vr(t0)}, {vr(t1)}")
    a.emit(f"v_mul_u32_u24 {vr(t0)}, {rowbytes}, {vr(t0)}")
    a.emit(f"v_bfe_u32 {vr(t1)}, {vr(lane)}, 4, 1")
    a.emit(f"v_lshl_add_u32 {vr(t0)}, {vr(t1)}, 5, {vr(t0)}")
    a.emit(f"v_and_b32 {vr(t1)}, 3, {vr(lane)}")
    a.emit(f"v_lshl_add_u32 {vr(dst)}, {vr(t1)}, 3, {vr(t0)}")

class P3:
    def __init__(self, a, prof):
        self.a = a; self.prof = prof; self.issued = []

    def pre(self):
        a = self.a; name = "P3"
        a.emit("s_load_dwordx2 s[6:7], s[0:1], 32")
        a.emit("s_load_dwordx2 s[8:9], s[0:1], 64")
        a.emit(f"s_load_dwordx2 {sr(S_OUT,2)}, s[0:1], 72")
        a.emit(f"v_mov_b32 {vr(V_LANE)}, {vr(V_LANE_G)}")
        a.emit(f"v_mov_b32 {vr(V_L16)}, {vr(V_L16_G)}")
        a.emit(f"s_mov_b32 {sr(S_W)}, {sr(S_WG)}")
        common_ids(a)
        a.emit(f"s_cmp_ge_u32 {sr(S_W)}, 4")
        a.emit(f"s_cbranch_scc1 {name}_lpre")
        a.emit(f"s_and_b32 {sr(S_RT)}, {sr(S_W)}, 1")
        a.emit(f"s_lshr_b32 {sr(S_KH)}, {sr(S_W)}, 1")
        a.emit(f"s_lshl_b32 {sr(S_T)}, {sr(S_RB)}, 1")
        a.emit(f"s_add_u32 {sr(S_T)}, {sr(S_T)}, {sr(S_RT)}")
        a.emit(f"s_mul_i32 {sr(S_T)}, {sr(S_T)}, 40")
        a.emit(f"s_mul_i32 {sr(S_T2)}, {sr(S_KH)}, 20")
        a.emit(f"s_add_u32 {sr(S_T)}, {sr(S_T)}, {sr(S_T2)}")
        a.emit(f"s_lshl_b32 {sr(S_T2)}, {sr(S_ROT)}, 1")
        a.emit(f"s_add_u32 {sr(S_T)}, {sr(S_T)}, {sr(S_T2)}")
        a.emit(f"s_lshl_b32 {sr(S_T)}, {sr(S_T)}, 10")
        a.emit(f"s_mul_i32 {sr(S_T2)}, {sr(S_PART)}, {WS_OB - WS_OA}")
        a.emit(f"s_add_u32 {sr(S_T)}, {sr(S_T)}, {sr(S_T2)}")
        a.emit(f"s_add_u32 {sr(S_T)}, {sr(S_T)}, {WS_OA}")
        a.emit(f"s_add_u32 {sr(S_O)}, {sr(S_WS)}, {sr(S_T)}")
        a.emit(f"s_addc_u32 {sr(S_O+1)}, {sr(S_WS+1)}, 0")
        a.emit(f"s_mov_b32 {sr(S_KC)}, {sr(S_ROT)}")
        a.emit(f"s_mov_b32 {sr(S_K1)}, 2048")
        tr_base(a, V_T2, V_LANE, V_T0, V_T3, 320)
        a.emit(f"s_mul_i32 {sr(S_T)}, {sr(S_KH)}, 10240")
        a.emit(f"v_add_u32 {vr(V_AB)}, {sr(S_T)}, {vr(V_T2)}")
        a.emit(f"v_add_u32 {vr(V_AB+1)}, {3*STAGE}, {vr(V_AB)}")
        a.emit(f"s_mul_i32 {sr(S_K2)}, {sr(S_W)}, 5632")
        a.emit(f"s_add_u32 {sr(S_K2)}, {sr(S_K2)}, {TA}")
        for i in range(5):
            a.emit(f"v_add_u32 {vr(V_T0)}, {64*i}, {vr(V_LANE)}")
            a.emit(f"v_mul_u32_u24 {vr(V_T1)}, 6554, {vr(V_T0)}")
            a.emit(f"v_lshrrev_b32 {vr(V_T1)}, 16, {vr(V_T1)}")
            a.emit(f"v_lshlrev_b32 {vr(V_T3)}, 4, {vr(V_T0)}")
            a.emit(f"v_lshl_add_u32 {vr(V_TR+i)}, {vr(V_T1)}, 4, {vr(V_T3)}")
            a.emit(f"v_add_u32 {vr(V_TR+i)}, {sr(S_K2)}, {vr(V_TR+i)}")
            a.emit(f"v_mul_u32_u24 {vr(V_T1)}, 2400, {vr(V_T1)}")
            a.emit(f"v_add_u32 {vr(V_OUT+i)}, {vr(V_T1)}, {vr(V_T3)}")
        a.emit(f"v_and_b32 {vr(V_T0)}, 31, {vr(V_LANE)}")
        a.emit(f"v_mul_u32_u24 {vr(V_T0)}, 176, {vr(V_T0)}")
        a.emit(f"v_lshrrev_b32 {vr(V_T1)}, 5, {vr(V_LANE)}")
        a.emit(f"v_lshl_add_u32 {vr(V_T0)}, {vr(V_T1)}, 3, {vr(V_T0)}")
        a.emit(f"v_add_u32 {vr(V_TW)}, {sr(S_K2)}, {vr(V_T0)}")
        a.emit(f"s_mul_i32 {sr(S_T)}, {sr(S_W)}, 10240")
        a.emit(f"v_add_u32 {vr(V_XW)}, {sr(S_T)}, {vr(V_L16)}")
        a.emit(f"s_xor_b32 {sr(S_T2)}, {sr(S_W)}, 2")
        a.emit(f"s_mul_i32 {sr(S_T2)}, {sr(S_T2)}, 10240")
        a.emit(f"v_add_u32 {vr(V_XR)}, {sr(S_T2)}, {vr(V_L16)}")
        a.emit(f"s_lshl_b32 {sr(S_T)}, {sr(S_RB)}, 6")
        a.emit(f"s_lshl_b32 {sr(S_T2)}, {sr(S_RT)}, 5")
        a.emit(f"s_add_u32 {sr(S_T)}, {sr(S_T)}, {sr(S_T2)}")
        a.emit(f"s_mul_i32 {sr(S_T)}, {sr(S_T)}, 2560")
        a.emit(f"s_mul_i32 {sr(S_T2)}, {sr(S_PART)}, 1280")
        a.emit(f"s_add_u32 {sr(S_T)}, {sr(S_T)}, {sr(S_T2)}")
        a.emit(f"s_mul_i32 {sr(S_T2)}, {sr(S_CG)}, 320")
        a.emit(f"s_add_u32 {sr(S_T)}, {sr(S_T)}, {sr(S_T2)}")
        a.emit(f"s_mul_i32 {sr(S_T2)}, {sr(S_KH)}, 160")
        a.emit(f"s_add_u32 {sr(S_T)}, {sr(S_T)}, {sr(S_T2)}")
        a.emit("s_waitcnt lgkmcnt(0)")
        a.emit(f"s_add_u32 {sr(S_OUT)}, {sr(S_OUT)}, {sr(S_T)}")
        a.emit(f"s_addc_u32 {sr(S_OUT+1)}, {sr(S_OUT+1)}, 0")
        a.emit(f"s_branch {name}_prej")
        a.label(f"{name}_lpre")
        a.emit(f"s_sub_u32 {sr(S_W)}, {sr(S_W)}, 4")
        a.emit(f"s_lshr_b32 {sr(S_KH)}, {sr(S_W)}, 1")
        a.emit(f"s_and_b32 {sr(S_RT)}, {sr(S_W)}, 1")
        for n in range(5):
            a.emit(f"v_add_u32 {vr(V_T0)}, {64*n}, {vr(V_LANE)}")
            div20(a, V_T1, V_T2, V_T0)
            a.emit(f"v_mul_u32_u24 {vr(V_T1)}, 1280, {vr(V_T1)}")
            a.emit(f"v_lshl_add_u32 {vr(V_LO+n)}, {vr(V_T2)}, 4, {vr(V_T1)}")
        a.emit(f"s_mul_i32 {sr(S_T)}, {sr(S_KH)}, {320*1280}")
        a.emit(f"s_mul_i32 {sr(S_T2)}, {sr(S_RT)}, {16*1280}")
        a.emit(f"s_add_u32 {sr(S_T)}, {sr(S_T)}, {sr(S_T2)}")
        a.emit(f"s_mul_i32 {sr(S_T2)}, {sr(S_CG)}, 320")
        a.emit(f"s_add_u32 {sr(S_T)}, {sr(S_T)}, {sr(S_T2)}")
        a.emit(f"s_mul_i32 {sr(S_T2)}, {sr(S_ROT)}, {32*1280}")
        a.emit(f"s_add_u32 {sr(S_T)}, {sr(S_T)}, {sr(S_T2)}")
        a.emit(f"s_mul_i32 {sr(S_M0)}, {sr(S_KH)}, 10240")
        a.emit(f"s_mul_i32 {sr(S_T2)}, {sr(S_RT)}, 5120")
        a.emit(f"s_add_u32 {sr(S_M0)}, {sr(S_M0)}, {sr(S_T2)}")
        a.emit("s_waitcnt lgkmcnt(0)")
        a.emit(f"s_cmp_eq_u32 {sr(S_PART)}, 0")
        a.emit(f"s_cselect_b32 {sr(S_WO)}, s6, s8")
        a.emit(f"s_cselect_b32 {sr(S_WO+1)}, s7, s9")
        a.emit(f"s_add_u32 {sr(S_WO)}, {sr(S_WO)}, {sr(S_T)}")
        a.emit(f"s_addc_u32 {sr(S_WO+1)}, {sr(S_WO+1)}, 0")
        a.emit(f"s_mov_b32 {sr(S_KC)}, {sr(S_ROT)}")
        a.emit(f"s_mov_b32 {sr(S_K1)}, {32*1280}")
        for c in range(6): self.chunk(c)
        a.label(f"{name}_prej")

    def chunk(self, c):
        a = self.a
        buf = c % NBUF
        if c > 0:
            a.emit(f"s_add_u32 {sr(S_KC)}, {sr(S_KC)}, 1")
            a.emit(f"s_cmp_eq_u32 {sr(S_KC)}, 10")
            a.emit(f"s_cselect_b32 {sr(S_KC)}, 0, {sr(S_KC)}")
            a.emit(f"s_cselect_b32 {sr(S_T)}, {-9*32*1280}, {sr(S_K1)}")
            a.emit(f"s_ashr_i32 {sr(S_SX)}, {sr(S_T)}, 31")
            a.emit(f"s_add_u32 {sr(S_WO)}, {sr(S_WO)}, {sr(S_T)}")
            a.emit(f"s_addc_u32 {sr(S_WO+1)}, {sr(S_WO+1)}, {sr(S_SX)}")
        for n in range(5):
            a.emit(f"s_add_u32 m0, {sr(S_M0)}, {buf*STAGE + n*1024}")
            a.emit(f"global_load_lds_dwordx4 {vr(V_LO+n)}, {sr(S_WO,2)}")
        self.issued.append(c)

    def main(self):
        a = self.a; name = "P3"; prof = self.prof
        a.emit(f"s_cmp_ge_u32 {sr(S_WG)}, 4")
        a.emit(f"s_cbranch_scc1 {name}_loader")
        def oload(k):
            if k and k % 2 == 0:
                a.emit(f"s_add_u32 {sr(S_KC)}, {sr(S_KC)}, 1")
                a.emit(f"s_cmp_eq_u32 {sr(S_KC)}, 10")
                a.emit(f"s_cselect_b32 {sr(S_KC)}, 0, {sr(S_KC)}")
                a.emit(f"s_cselect_b32 {sr(S_T)}, {-9*2048}, {sr(S_K1)}")
                a.emit(f"s_ashr_i32 {sr(S_SX)}, {sr(S_T)}, 31")
                a.emit(f"s_add_u32 {sr(S_O)}, {sr(S_O)}, {sr(S_T)}")
                a.emit(f"s_addc_u32 {sr(S_O+1)}, {sr(S_O+1)}, {sr(S_SX)}")
            a.emit(f"global_load_dwordx4 {vr(BF+4*k,4)}, {vr(V_L16)}, {sr(S_O,2)} offset:{(k%2)*1024} sc1")
        NPRE = 12
        for k in range(NPRE): oload(k)
        def rd(ks, t):
            c = ks >> 1; s = ks & 1; buf = c % NBUF
            base = V_AB + (buf // 3); off = (buf % 3) * STAGE + s * 5120 + t * 64
            st = AF + 20 * (ks & 1) + 4 * t
            a.emit(f"ds_read_b64_tr_b16 {vr(st,2)}, {vr(base)} offset:{off}")
            a.emit(f"ds_read_b64_tr_b16 {vr(st+2,2)}, {vr(base)} offset:{off+1280}")
        a.emit("s_barrier")
        stamp(a, 6, prof)
        if prof: a.emit("s_waitcnt lgkmcnt(0)")
        for t in range(5): rd(0, t)
        a.emit(f"s_waitcnt lgkmcnt(8) vmcnt({NPRE-1})")
        for ks in range(20):
            for t in range(5):
                mfma(a, ACC + 16 * t, AF + 20 * (ks & 1) + 4 * t, BF + 4 * ks, None if ks == 0 else ACC + 16 * t)
                if ks < 19:
                    w = "s_waitcnt lgkmcnt(6)"
                    if t == 4: w += f" vmcnt({min(NPRE-1, 18-ks)})"
                    a.emit(w)
                    if t == 2 and ks + NPRE < 20: oload(ks + NPRE)
                    if t == 0 and (ks & 1): a.emit("s_barrier")
                    rd(ks + 1, t)
                elif t < 4:
                    a.emit(f"s_waitcnt lgkmcnt({2*(3-t)})")
        a.emit("s_barrier")
        a.emit(f"s_cmp_eq_u32 {sr(S_KH)}, 0")
        a.emit(f"s_cbranch_scc0 {name}_k1")
        for var in range(2):
            keep = 0 if var == 0 else 40
            send = 40 - keep
            a.emit("s_nop 7")
            for i in range(10):
                a.emit(f"ds_write_b128 {vr(V_XW)}, {vr(ACC+send+4*i,4)} offset:{i*1024}")
            a.emit("s_waitcnt lgkmcnt(0)")
            a.emit("s_barrier")
            for i in range(10):
                a.emit(f"ds_read_b128 {vr(BF+4*i,4)}, {vr(V_XR)} offset:{i*1024}")
            for i in range(10):
                a.emit(f"s_waitcnt lgkmcnt({9-i})")
                a.emit(f"v_pk_add_f32 {vr(BF+4*i,2)}, {vr(BF+4*i,2)}, {vr(ACC+keep+4*i,2)}")
                a.emit(f"v_pk_add_f32 {vr(BF+4*i+2,2)}, {vr(BF+4*i+2,2)}, {vr(ACC+keep+4*i+2,2)}")
                a.emit(f"v_cvt_pk_bf16_f32 {vr(AF+2*i)}, {vr(BF+4*i)}, {vr(BF+4*i+1)}")
                a.emit(f"v_cvt_pk_bf16_f32 {vr(AF+2*i+1)}, {vr(BF+4*i+2)}, {vr(BF+4*i+3)}")
            if var == 0:
                a.emit(f"s_branch {name}_fin")
                a.label(f"{name}_k1")
        a.label(f"{name}_fin")
        for q in range(10):
            a.emit(f"ds_write_b64 {vr(V_TW)}, {vr(AF+2*q,2)} offset:{q*16}")
        a.emit("s_waitcnt lgkmcnt(0)")
        for i in range(5):
            a.emit(f"ds_read_b128 {vr(BF+4*i,4)}, {vr(V_TR+i)}")
        for i in range(5):
            a.emit(f"s_waitcnt lgkmcnt({4-i})")
            a.emit(f"global_store_dwordx4 {vr(V_OUT+i)}, {vr(BF+4*i,4)}, {sr(S_OUT,2)}")
        a.emit(f"s_branch {name}_end")
        a.label(f"{name}_loader")
        for c in range(10):
            after = len([x for x in self.issued if x > c])
            a.emit(f"s_waitcnt vmcnt({5*after})")
            a.emit("s_barrier")
            if c >= 2 and c + 4 < 10: self.chunk(c + 4)
        a.emit("s_barrier")
        a.emit("s_barrier")
        a.label(f"{name}_end")
```

```python
from asm import *
from layout import *
from common import *
import fp1, fp2, fp3

def gen_fused(name="fused_kernel", prof=False, yield_at=10):
    a = Asm()
    a(f".p2align 8\n.globl {name}\n.type {name},@function")
    a.label(name)
    a.emit("s_cmp_ge_u32 s2, 256")
    a.emit(f"s_cbranch_scc1 {name}_end")
    stamp(a, 0, prof)
    a.emit(f"s_load_dwordx2 {sr(S_WS,2)}, s[0:1], 88")
    a.emit(f"s_load_dwordx2 {sr(S_DBG,2)}, s[0:1], 80")
    a.emit(f"v_lshrrev_b32 v1, 6, v0")
    a.emit(f"v_and_b32 {vr(V_LANE_G)}, 63, v0")
    a.emit(f"v_readfirstlane_b32 {sr(S_WG)}, v1")
    a.emit(f"v_lshlrev_b32 {vr(V_L16_G)}, 4, {vr(V_LANE_G)}")
    a.emit("s_waitcnt lgkmcnt(0)")
    init_counters(a, 4, 8)
    fp1.phase1(a, prof)
    gbar_arrive(a, 0, 224, 225)
    stamp(a, 3, prof)
    fp2.phase2(a, prof, yield_at)
    gbar_wait(a, 0, 224, 225)
    fp2.phase2_after_barrier(a, prof, yield_at)
    a.emit("s_setprio 0")
    gbar_arrive(a, 1, 224, 225)
    p3 = fp3.P3(a, prof)
    p3.pre()
    gbar_wait(a, 1, 224, 225)
    p3.main()
    stamp(a, 7, prof)
    stamp_store(a, prof, S_WS, S_WG, 2, 3, 8, WS_PROF)
    a.label(f"{name}_end")
    a.emit("s_endpgm")
    desc = f"""
.amdhsa_kernel {name}
  .amdhsa_next_free_vgpr {NV}
  .amdhsa_next_free_sgpr 102
  .amdhsa_accum_offset {NV}
  .amdhsa_group_segment_fixed_size 0
  .amdhsa_kernarg_size 96
  .amdhsa_user_sgpr_count 2
  .amdhsa_user_sgpr_kernarg_segment_ptr 1
  .amdhsa_system_sgpr_workgroup_id_x 1
.end_amdhsa_kernel
"""
    launch = f"; @launch kernel={name} grid=(256,1,1) block=(512,1,1) lds={fp1.LDS_P1}"
    return a.text(), desc, launch
```

```python
from asm import *
from layout import *

ACC = 0
BF = 80
AF = 160
M_ = 200
V_LANE = M_
V_L16 = M_ + 1
OPRE = 4
V_T0 = M_ + 2; V_T1 = M_ + 3; V_T2 = M_ + 4; V_T3 = M_ + 5
V_AB = M_ + 6
V_OUT = M_ + 8
V_LO = M_ + 8
NV = 224
S_WS = 4; S_W = 10; S_T = 14; S_T2 = 15; S_PART = 11; S_RB = 12; S_CG = 13
S_WO = 16
S_O = 18
S_OUT = 20
S_ROT = 26; S_KC = 27; S_K1 = 28; S_K2 = 29; S_SX = 30
S_RT = 22; S_KH = 23; S_M0 = 25
STAGE = 20480
NBUF = 6
LDS_BYTES = NBUF * STAGE

def mfma(a, d, A, B, C):
    c = "0" if C is None else vr(C, 16)
    a.emit(f"v_mfma_f32_32x32x16_bf16 {vr(d,16)}, {vr(A,4)}, {vr(B,4)}, {c}")

def common_ids(a):
    a.emit(f"s_and_b32 {sr(S_T)}, s2, 7")
    a.emit(f"s_lshr_b32 {sr(S_T2)}, s2, 3")
    a.emit(f"s_lshr_b32 {sr(S_PART)}, {sr(S_T)}, 2")
    a.emit(f"s_and_b32 {sr(S_T)}, {sr(S_T)}, 3")
    a.emit(f"s_lshl_b32 {sr(S_T)}, {sr(S_T)}, 3")
    a.emit(f"s_lshr_b32 {sr(S_RB)}, {sr(S_T2)}, 2")
    a.emit(f"s_add_u32 {sr(S_RB)}, {sr(S_RB)}, {sr(S_T)}")
    a.emit(f"s_and_b32 {sr(S_CG)}, {sr(S_T2)}, 3")
    a.emit(f"s_lshr_b32 {sr(S_ROT)}, {sr(S_T2)}, 2")
    a.emit(f"s_mul_i32 {sr(S_T)}, {sr(S_CG)}, 3")
    a.emit(f"s_add_u32 {sr(S_ROT)}, {sr(S_ROT)}, {sr(S_T)}")
    a.emit(f"s_cmp_ge_u32 {sr(S_ROT)}, 10")
    a.emit(f"s_cselect_b32 {sr(S_T)}, 10, 0")
    a.emit(f"s_sub_u32 {sr(S_ROT)}, {sr(S_ROT)}, {sr(S_T)}")

def div20(a, dst_row, dst_seg, p):
    a.emit(f"v_mul_u32_u24 {vr(dst_row)}, 3277, {vr(p)}")
    a.emit(f"v_lshrrev_b32 {vr(dst_row)}, 16, {vr(dst_row)}")
    a.emit(f"v_mul_u32_u24 {vr(dst_seg)}, 20, {vr(dst_row)}")
    a.emit(f"v_sub_u32 {vr(dst_seg)}, {vr(p)}, {vr(dst_seg)}")

def tr_base(a, dst, lane, t0, t1, rowbytes):
    a.emit(f"v_lshrrev_b32 {vr(t0)}, 5, {vr(lane)}")
    a.emit(f"v_lshlrev_b32 {vr(t0)}, 3, {vr(t0)}")
    a.emit(f"v_bfe_u32 {vr(t1)}, {vr(lane)}, 2, 2")
    a.emit(f"v_add_u32 {vr(t0)}, {vr(t0)}, {vr(t1)}")
    a.emit(f"v_mul_u32_u24 {vr(t0)}, {rowbytes}, {vr(t0)}")
    a.emit(f"v_bfe_u32 {vr(t1)}, {vr(lane)}, 4, 1")
    a.emit(f"v_lshl_add_u32 {vr(t0)}, {vr(t1)}, 5, {vr(t0)}")
    a.emit(f"v_and_b32 {vr(t1)}, 3, {vr(lane)}")
    a.emit(f"v_lshl_add_u32 {vr(dst)}, {vr(t1)}, 3, {vr(t0)}")

def gen_oproj(name="oproj_kernel", prof=False):
    a = Asm()
    a(f".p2align 8\n.globl {name}\n.type {name},@function")
    a.label(name)
    a.emit("s_cmp_ge_u32 s2, 256")
    a.emit(f"s_cbranch_scc1 {name}_end")
    stamp(a, 0, prof)
    a.emit(f"s_load_dwordx2 {sr(S_WS,2)}, s[0:1], 88")
    a.emit(f"s_load_dwordx2 s[6:7], s[0:1], 32")
    a.emit(f"s_load_dwordx2 s[8:9], s[0:1], 64")
    a.emit(f"s_load_dwordx2 {sr(S_OUT,2)}, s[0:1], 72")
    a.emit(f"v_lshrrev_b32 {vr(V_T0)}, 6, v0")
    a.emit(f"v_and_b32 {vr(V_LANE)}, 63, v0")
    a.emit(f"v_readfirstlane_b32 {sr(S_W)}, {vr(V_T0)}")
    common_ids(a)
    a.emit(f"s_cmp_ge_u32 {sr(S_W)}, 4")
    a.emit(f"s_cbranch_scc1 {name}_loader")
    a.emit(f"s_and_b32 {sr(S_RT)}, {sr(S_W)}, 1")
    a.emit(f"s_lshr_b32 {sr(S_KH)}, {sr(S_W)}, 1")
    a.emit(f"s_lshl_b32 {sr(S_T)}, {sr(S_RB)}, 1")
    a.emit(f"s_add_u32 {sr(S_T)}, {sr(S_T)}, {sr(S_RT)}")
    a.emit(f"s_mul_i32 {sr(S_T)}, {sr(S_T)}, 40")
    a.emit(f"s_mul_i32 {sr(S_T2)}, {sr(S_KH)}, 20")
    a.emit(f"s_add_u32 {sr(S_T)}, {sr(S_T)}, {sr(S_T2)}")
    a.emit(f"s_lshl_b32 {sr(S_T)}, {sr(S_T)}, 10")
    a.emit(f"s_mul_i32 {sr(S_T2)}, {sr(S_PART)}, {WS_OB - WS_OA}")
    a.emit(f"s_add_u32 {sr(S_T)}, {sr(S_T)}, {sr(S_T2)}")
    a.emit(f"s_add_u32 {sr(S_T)}, {sr(S_T)}, {WS_OA}")
    a.emit(f"v_lshlrev_b32 {vr(V_T1)}, 4, {vr(V_LANE)}")
    a.emit("s_waitcnt lgkmcnt(0)")
    a.emit(f"s_add_u32 {sr(S_O)}, {sr(S_WS)}, {sr(S_T)}")
    a.emit(f"s_addc_u32 {sr(S_O+1)}, {sr(S_WS+1)}, 0")
    a.emit(f"v_mov_b32 {vr(V_L16)}, {vr(V_T1)}")
    a.emit(f"s_lshl_b32 {sr(S_T)}, {sr(S_ROT)}, 11")
    a.emit(f"s_add_u32 {sr(S_O)}, {sr(S_O)}, {sr(S_T)}")
    a.emit(f"s_addc_u32 {sr(S_O+1)}, {sr(S_O+1)}, 0")
    a.emit(f"s_mov_b32 {sr(S_KC)}, {sr(S_ROT)}")
    a.emit(f"s_mov_b32 {sr(S_K1)}, 2048")
    def oload(k):
        if k and k % 2 == 0:
            a.emit(f"s_add_u32 {sr(S_KC)}, {sr(S_KC)}, 1")
            a.emit(f"s_cmp_eq_u32 {sr(S_KC)}, 10")
            a.emit(f"s_cselect_b32 {sr(S_KC)}, 0, {sr(S_KC)}")
            a.emit(f"s_cselect_b32 {sr(S_T)}, {-9*2048}, {sr(S_K1)}")
            a.emit(f"s_ashr_i32 {sr(S_SX)}, {sr(S_T)}, 31")
            a.emit(f"s_add_u32 {sr(S_O)}, {sr(S_O)}, {sr(S_T)}")
            a.emit(f"s_addc_u32 {sr(S_O+1)}, {sr(S_O+1)}, {sr(S_SX)}")
        a.emit(f"global_load_dwordx4 {vr(BF+4*k,4)}, {vr(V_L16)}, {sr(S_O,2)} offset:{(k%2)*1024}")
    for k in range(OPRE): oload(k)
    tr_base(a, V_T2, V_LANE, V_T0, V_T3, 320)
    a.emit(f"s_mul_i32 {sr(S_T)}, {sr(S_KH)}, 10240")
    a.emit(f"v_add_u32 {vr(V_AB)}, {sr(S_T)}, {vr(V_T2)}")
    a.emit(f"v_add_u32 {vr(V_AB+1)}, {3*STAGE}, {vr(V_AB)}")
    a.emit(f"s_lshl_b32 {sr(S_T)}, {sr(S_RB)}, 6")
    a.emit(f"s_lshl_b32 {sr(S_T2)}, {sr(S_RT)}, 5")
    a.emit(f"s_add_u32 {sr(S_T)}, {sr(S_T)}, {sr(S_T2)}")
    a.emit(f"s_mul_i32 {sr(S_T)}, {sr(S_T)}, 2560")
    a.emit(f"s_mul_i32 {sr(S_T2)}, {sr(S_PART)}, 1280")
    a.emit(f"s_add_u32 {sr(S_T)}, {sr(S_T)}, {sr(S_T2)}")
    a.emit(f"s_mul_i32 {sr(S_T2)}, {sr(S_CG)}, 320")
    a.emit(f"s_add_u32 {sr(S_T)}, {sr(S_T)}, {sr(S_T2)}")
    a.emit(f"s_mul_i32 {sr(S_T2)}, {sr(S_KH)}, 160")
    a.emit(f"s_add_u32 {sr(S_T)}, {sr(S_T)}, {sr(S_T2)}")
    a.emit(f"s_add_u32 {sr(S_OUT)}, {sr(S_OUT)}, {sr(S_T)}")
    a.emit(f"s_addc_u32 {sr(S_OUT+1)}, {sr(S_OUT+1)}, 0")
    for i in range(5):
        a.emit(f"v_add_u32 {vr(V_T0)}, {64*i}, {vr(V_LANE)}")
        a.emit(f"v_mul_u32_u24 {vr(V_T1)}, 6554, {vr(V_T0)}")
        a.emit(f"v_lshrrev_b32 {vr(V_T1)}, 16, {vr(V_T1)}")
        a.emit(f"v_mul_u32_u24 {vr(V_T2)}, 10, {vr(V_T1)}")
        a.emit(f"v_sub_u32 {vr(V_T2)}, {vr(V_T0)}, {vr(V_T2)}")
        a.emit(f"v_mul_u32_u24 {vr(V_T1)}, 2560, {vr(V_T1)}")
        a.emit(f"v_lshl_add_u32 {vr(V_OUT+i)}, {vr(V_T2)}, 4, {vr(V_T1)}")
    def rd(ks, t):
        c = ks >> 1; s = ks & 1; buf = c % NBUF
        base = V_AB + (buf // 3); off = (buf % 3) * STAGE + s * 5120 + t * 64
        st = AF + 20 * (ks & 1) + 4 * t
        a.emit(f"ds_read_b64_tr_b16 {vr(st,2)}, {vr(base)} offset:{off}")
        a.emit(f"ds_read_b64_tr_b16 {vr(st+2,2)}, {vr(base)} offset:{off+1280}")
    a.emit("s_barrier")
    stamp(a, 1, prof)
    if prof: a.emit("s_waitcnt lgkmcnt(0)")
    for t in range(5): rd(0, t)
    a.emit(f"s_waitcnt lgkmcnt(8) vmcnt({OPRE-1})")
    for ks in range(20):
        for t in range(5):
            mfma(a, ACC + 16 * t, AF + 20 * (ks & 1) + 4 * t, BF + 4 * ks, None if ks == 0 else ACC + 16 * t)
            if ks < 19:
                w = "s_waitcnt lgkmcnt(6)"
                if t == 4: w += f" vmcnt({min(OPRE-1, 18-ks)})"
                a.emit(w)
                if t == 2 and ks + OPRE < 20: oload(ks + OPRE)
                if t == 0 and (ks & 1): a.emit("s_barrier")
                rd(ks + 1, t)
            elif t < 4:
                a.emit(f"s_waitcnt lgkmcnt({2*(3-t)})")
    stamp(a, 2, prof)
    if prof: a.emit("s_waitcnt lgkmcnt(0)")
    a.emit("s_barrier")
    a.emit(f"v_lshlrev_b32 {vr(V_T1)}, 4, {vr(V_LANE)}")
    a.emit(f"s_mul_i32 {sr(S_T)}, {sr(S_W)}, 10240")
    a.emit(f"v_add_u32 {vr(V_T0)}, {sr(S_T)}, {vr(V_T1)}")
    a.emit(f"s_xor_b32 {sr(S_T2)}, {sr(S_W)}, 2")
    a.emit(f"s_mul_i32 {sr(S_T2)}, {sr(S_T2)}, 10240")
    a.emit(f"v_add_u32 {vr(V_T2)}, {sr(S_T2)}, {vr(V_T1)}")
    a.emit(f"s_cmp_eq_u32 {sr(S_KH)}, 0")
    a.emit(f"s_cbranch_scc0 {name}_k1")
    for var in range(2):
        keep = 0 if var == 0 else 40
        send = 40 - keep
        if var == 0: a.emit("s_nop 3")
        order = list(range(10))
        for i in order:
            a.emit(f"ds_write_b128 {vr(V_T0)}, {vr(ACC+send+4*i,4)} offset:{i*1024}")
        a.emit("s_waitcnt lgkmcnt(0)")
        a.emit("s_barrier")
        for i in range(10):
            a.emit(f"ds_read_b128 {vr(BF+4*i,4)}, {vr(V_T2)} offset:{i*1024}")
        for i in range(10):
            a.emit(f"s_waitcnt lgkmcnt({9-i})")
            a.emit(f"v_pk_add_f32 {vr(BF+4*i,2)}, {vr(BF+4*i,2)}, {vr(ACC+keep+4*i,2)}")
            a.emit(f"v_pk_add_f32 {vr(BF+4*i+2,2)}, {vr(BF+4*i+2,2)}, {vr(ACC+keep+4*i+2,2)}")
        if var == 0:
            a.emit(f"s_branch {name}_fin")
            a.label(f"{name}_k1")
    a.label(f"{name}_fin")
    for q in range(10):
        a.emit(f"v_cvt_pk_bf16_f32 {vr(AF+2*q)}, {vr(BF+4*q)}, {vr(BF+4*q+1)}")
        a.emit(f"v_cvt_pk_bf16_f32 {vr(AF+2*q+1)}, {vr(BF+4*q+2)}, {vr(BF+4*q+3)}")
    TA = 40960
    a.emit(f"v_and_b32 {vr(V_T0)}, 31, {vr(V_LANE)}")
    a.emit(f"v_mul_u32_u24 {vr(V_T0)}, 176, {vr(V_T0)}")
    a.emit(f"v_lshrrev_b32 {vr(V_T1)}, 5, {vr(V_LANE)}")
    a.emit(f"v_lshl_add_u32 {vr(V_T0)}, {vr(V_T1)}, 3, {vr(V_T0)}")
    a.emit(f"s_mul_i32 {sr(S_T)}, {sr(S_W)}, 5632")
    a.emit(f"s_add_u32 {sr(S_T)}, {sr(S_T)}, {TA}")
    a.emit(f"v_add_u32 {vr(V_T0)}, {sr(S_T)}, {vr(V_T0)}")
    for q in range(10):
        a.emit(f"ds_write_b64 {vr(V_T0)}, {vr(AF+2*q,2)} offset:{q*16}")
    for i in range(5):
        a.emit(f"v_add_u32 {vr(V_T1)}, {64*i}, {vr(V_LANE)}")
        a.emit(f"v_mul_u32_u24 {vr(V_T2)}, 6554, {vr(V_T1)}")
        a.emit(f"v_lshrrev_b32 {vr(V_T2)}, 16, {vr(V_T2)}")
        a.emit(f"v_lshlrev_b32 {vr(V_T1)}, 4, {vr(V_T1)}")
        a.emit(f"v_lshl_add_u32 {vr(BF+40+i)}, {vr(V_T2)}, 4, {vr(V_T1)}")
        a.emit(f"v_add_u32 {vr(BF+40+i)}, {sr(S_T)}, {vr(BF+40+i)}")
    a.emit("s_waitcnt lgkmcnt(0)")
    for i in range(5):
        a.emit(f"ds_read_b128 {vr(BF+4*i,4)}, {vr(BF+40+i)}")
    for i in range(5):
        a.emit(f"s_waitcnt lgkmcnt({4-i})")
        a.emit(f"global_store_dwordx4 {vr(V_OUT+i)}, {vr(BF+4*i,4)}, {sr(S_OUT,2)}")
    stamp(a, 3, prof)
    stamp_store(a, prof, S_WS, S_W, V_T0, V_T1, 8, WS_PROF + (2 << 20))
    a.emit("s_endpgm")
    a.label(f"{name}_loader")
    a.emit(f"s_sub_u32 {sr(S_W)}, {sr(S_W)}, 4")
    a.emit(f"s_lshr_b32 {sr(S_KH)}, {sr(S_W)}, 1")
    a.emit(f"s_and_b32 {sr(S_RT)}, {sr(S_W)}, 1")
    for n in range(5):
        a.emit(f"v_add_u32 {vr(V_T0)}, {64*n}, {vr(V_LANE)}")
        div20(a, V_T1, V_T2, V_T0)
        a.emit(f"v_mul_u32_u24 {vr(V_T1)}, 1280, {vr(V_T1)}")
        a.emit(f"v_lshl_add_u32 {vr(V_LO+n)}, {vr(V_T2)}, 4, {vr(V_T1)}")
    a.emit(f"s_mul_i32 {sr(S_T)}, {sr(S_KH)}, {320*1280}")
    a.emit(f"s_mul_i32 {sr(S_T2)}, {sr(S_RT)}, {16*1280}")
    a.emit(f"s_add_u32 {sr(S_T)}, {sr(S_T)}, {sr(S_T2)}")
    a.emit(f"s_mul_i32 {sr(S_T2)}, {sr(S_CG)}, 320")
    a.emit(f"s_add_u32 {sr(S_T)}, {sr(S_T)}, {sr(S_T2)}")
    a.emit(f"s_mul_i32 {sr(S_M0)}, {sr(S_KH)}, 10240")
    a.emit(f"s_mul_i32 {sr(S_T2)}, {sr(S_RT)}, 5120")
    a.emit(f"s_add_u32 {sr(S_M0)}, {sr(S_M0)}, {sr(S_T2)}")
    a.emit("s_waitcnt lgkmcnt(0)")
    a.emit(f"s_cmp_eq_u32 {sr(S_PART)}, 0")
    a.emit(f"s_cselect_b32 {sr(S_WO)}, s6, s8")
    a.emit(f"s_cselect_b32 {sr(S_WO+1)}, s7, s9")
    a.emit(f"s_add_u32 {sr(S_WO)}, {sr(S_WO)}, {sr(S_T)}")
    a.emit(f"s_addc_u32 {sr(S_WO+1)}, {sr(S_WO+1)}, 0")
    a.emit(f"s_mul_i32 {sr(S_T)}, {sr(S_ROT)}, {32*1280}")
    a.emit(f"s_add_u32 {sr(S_WO)}, {sr(S_WO)}, {sr(S_T)}")
    a.emit(f"s_addc_u32 {sr(S_WO+1)}, {sr(S_WO+1)}, 0")
    a.emit(f"s_mov_b32 {sr(S_KC)}, {sr(S_ROT)}")
    a.emit(f"s_mov_b32 {sr(S_K1)}, {32*1280}")
    issued = []
    def chunk(c):
        buf = c % NBUF
        if c > 0:
            a.emit(f"s_add_u32 {sr(S_KC)}, {sr(S_KC)}, 1")
            a.emit(f"s_cmp_eq_u32 {sr(S_KC)}, 10")
            a.emit(f"s_cselect_b32 {sr(S_KC)}, 0, {sr(S_KC)}")
            a.emit(f"s_cselect_b32 {sr(S_T)}, {-9*32*1280}, {sr(S_K1)}")
            a.emit(f"s_ashr_i32 {sr(S_SX)}, {sr(S_T)}, 31")
            a.emit(f"s_add_u32 {sr(S_WO)}, {sr(S_WO)}, {sr(S_T)}")
            a.emit(f"s_addc_u32 {sr(S_WO+1)}, {sr(S_WO+1)}, {sr(S_SX)}")
        for n in range(5):
            a.emit(f"s_add_u32 m0, {sr(S_M0)}, {buf*STAGE + n*1024}")
            a.emit("s_nop 0")
            a.emit(f"global_load_lds_dwordx4 {vr(V_LO+n)}, {sr(S_WO,2)}")
        issued.append(c)
    AHEAD = 3
    for c in range(AHEAD): chunk(c)
    for c in range(10):
        after = len([x for x in issued if x > c])
        a.emit(f"s_waitcnt vmcnt({5*after})")
        a.emit("s_barrier")
        if c + AHEAD < 10: chunk(c + AHEAD)
    a.emit("s_barrier")
    a.emit("s_barrier")
    a.label(f"{name}_end")
    a.emit("s_endpgm")
    desc = f"""
.amdhsa_kernel {name}
  .amdhsa_next_free_vgpr {NV}
  .amdhsa_next_free_sgpr 100
  .amdhsa_accum_offset {NV}
  .amdhsa_group_segment_fixed_size 0
  .amdhsa_kernarg_size 96
  .amdhsa_user_sgpr_count 2
  .amdhsa_user_sgpr_kernarg_segment_ptr 1
  .amdhsa_system_sgpr_workgroup_id_x 1
.end_amdhsa_kernel
"""
    launch = f"; @launch kernel={name} grid=(256,1,1) block=(512,1,1) lds={LDS_BYTES}"
    return a.text(), desc, launch
```

```python
from asm import *
from layout import *
from oproj import div20

ACC = 0
XT = 80
AF = 96
BFR = 144
WA = 152
XA = 158
E_ = 162
M_ = 200
V_LANE = M_
V_L16 = M_ + 1
V_T0 = M_ + 2; V_T1 = M_ + 3; V_T2 = M_ + 4; V_T3 = M_ + 5
V_LO = M_ + 6
NV = 224
S_WS = 4; S_W = 10; S_T = 14; S_T2 = 15
S_ROLE = 11
S_RB = 12; S_G = 13
S_X = 16; S_WB = 18; S_EX = 20
S_CNT = 22; S_M0X = 23; S_M0W = 24; S_M0E = 25; S_DELTA = 26; S_BUF = 27
S_WADV = 28; S_NC = 29
S_MLO = 30; S_MHI = 32
S_O = 34
S_EXM = 36
S_ROT = 42; S_KC = 43
S_K1 = 38; S_K2 = 39; S_K3 = 40; S_K4 = 41
XS = 16384; WS_ = 20480
STAGE = XS + WS_
EXTRA = 4 * STAGE
LDS_BYTES = EXTRA + 10240
LOG2E = 0x3fb8aa3b
import struct
def f2u(x): return struct.unpack("<I", struct.pack("<f", x))[0]

def mfma(a, d, A, B, C):
    c = "0" if C is None else vr(C, 16)
    a.emit(f"v_mfma_f32_32x32x16_bf16 {vr(d,16)}, {vr(A,4)}, {vr(B,4)}, {c}")
def mfma8(a, d, A, B, C):
    c = "0" if C is None else vr(C, 16)
    a.emit(f"v_mfma_f32_32x32x8_bf16 {vr(d,16)}, {vr(A,2)}, {vr(B,2)}, {c}")

def ids(a):
    a.emit(f"s_and_b32 {sr(S_T)}, s2, 7")
    a.emit(f"s_lshr_b32 {sr(S_T2)}, s2, 3")
    a.emit(f"s_lshr_b32 {sr(S_RB)}, {sr(S_T2)}, 2")
    a.emit(f"s_and_b32 {sr(S_G)}, {sr(S_T2)}, 3")
    a.emit(f"s_mul_i32 {sr(S_ROT)}, {sr(S_G)}, 3")
    a.emit(f"s_add_u32 {sr(S_ROT)}, {sr(S_ROT)}, {sr(S_RB)}")
    a.emit(f"s_cmp_ge_u32 {sr(S_ROT)}, 10")
    a.emit(f"s_cselect_b32 {sr(S_T2)}, 10, 0")
    a.emit(f"s_sub_u32 {sr(S_ROT)}, {sr(S_ROT)}, {sr(S_T2)}")
    a.emit(f"s_cmp_ge_u32 {sr(S_T)}, 2")
    a.emit("s_cbranch_scc1 L1_idsB")
    a.emit(f"s_lshl_b32 {sr(S_T)}, {sr(S_T)}, 3")
    a.emit(f"s_add_u32 {sr(S_RB)}, {sr(S_RB)}, {sr(S_T)}")
    a.emit(f"s_add_u32 {sr(S_ROLE)}, {sr(S_G)}, 1")
    a.emit(f"s_cmp_ge_u32 {sr(S_G)}, 2")
    a.emit(f"s_cselect_b32 {sr(S_ROLE)}, 0, {sr(S_ROLE)}")
    a.emit("s_branch L1_idsE")
    a.label("L1_idsB")
    a.emit(f"s_sub_u32 {sr(S_T)}, {sr(S_T)}, 2")
    a.emit(f"s_and_b32 {sr(S_T2)}, {sr(S_T)}, 1")
    a.emit(f"s_lshl_b32 {sr(S_T2)}, {sr(S_T2)}, 3")
    a.emit(f"s_add_u32 {sr(S_RB)}, {sr(S_RB)}, {sr(S_T2)}")
    a.emit(f"s_lshr_b32 {sr(S_T)}, {sr(S_T)}, 1")
    a.emit(f"s_cmp_eq_u32 {sr(S_T)}, 0")
    a.emit(f"s_cselect_b32 {sr(S_ROLE)}, 3, 4")
    a.emit("s_cbranch_scc1 L1_idsE")
    a.emit(f"s_sub_u32 {sr(S_T)}, {sr(S_T)}, 1")
    a.emit(f"s_lshl_b32 {sr(S_T)}, {sr(S_T)}, 2")
    a.emit(f"s_add_u32 {sr(S_G)}, {sr(S_G)}, {sr(S_T)}")
    a.label("L1_idsE")

def kstep(a, s, extra):
    cur = s & 1; nxt = cur ^ 1
    ns = (s + 1) & 3
    nt = 6 if extra else 5
    for t in range(nt):
        if t < 5:
            mfma(a, ACC + 16 * t, AF + 24 * cur + 4 * t, BFR + 4 * cur, ACC + 16 * t)
        elif extra == 'K':
            mfma(a, XT, AF + 24 * cur + 20, BFR + 4 * cur, XT)
        else:
            mfma(a, XT, BFR + 4 * cur, AF + 24 * cur + 20, XT)
        if t < nt - 1:
            n_after = 2 * (nt - 2 - t) + (0 if t == 0 else 2 * t + 1)
        else:
            n_after = 2 * (nt - 2)
        a.emit(f"s_waitcnt lgkmcnt({n_after})")
        if t == 0:
            if s == 3:
                a.emit("s_barrier")
                for r in list(range(XA, XA + 4)) + list(range(WA, WA + 5)):
                    a.emit(f"v_add_u32 {vr(r)}, {sr(S_DELTA)}, {vr(r)}")
                if extra:
                    a.emit(f"v_add_u32 {vr(WA+5)}, {sr(S_NC)}, {vr(WA+5)}")
            a.emit(f"ds_read_b128 {vr(BFR+4*nxt,4)}, {vr(XA+ns)}")
        if t < 5:
            off = ns * 16 * 320
            a.emit(f"ds_read_b64_tr_b16 {vr(AF+24*nxt+4*t,2)}, {vr(WA+t)} offset:{off}")
            a.emit(f"ds_read_b64_tr_b16 {vr(AF+24*nxt+4*t+2,2)}, {vr(WA+t)} offset:{off+1280}")
        else:
            off = ns * 16 * 40
            a.emit(f"ds_read_b64_tr_b16 {vr(AF+24*nxt+20,2)}, {vr(WA+5)} offset:{off}")
            a.emit(f"ds_read_b64_tr_b16 {vr(AF+24*nxt+22,2)}, {vr(WA+5)} offset:{off+160}")

def mainloop(a, tag, extra, prof):
    nt = 6 if extra else 5
    a.emit("s_barrier")
    stamp(a, 1, prof)
    if prof: a.emit("s_waitcnt lgkmcnt(0)")
    a.emit(f"ds_read_b128 {vr(BFR,4)}, {vr(XA)}")
    for t in range(nt):
        if t < 5:
            a.emit(f"ds_read_b64_tr_b16 {vr(AF+4*t,2)}, {vr(WA+t)}")
            a.emit(f"ds_read_b64_tr_b16 {vr(AF+4*t+2,2)}, {vr(WA+t)} offset:1280")
        else:
            a.emit(f"ds_read_b64_tr_b16 {vr(AF+20,2)}, {vr(WA+5)}")
            a.emit(f"ds_read_b64_tr_b16 {vr(AF+22,2)}, {vr(WA+5)} offset:160")
    a.emit(f"s_mov_b32 {sr(S_CNT)}, 10")
    a.emit(f"s_mov_b32 {sr(S_BUF)}, 0")
    a.emit(f"s_mov_b32 {sr(S_K3)}, {STAGE}")
    a.emit(f"s_mov_b32 {sr(S_K4)}, 2560")
    a.emit(f"s_waitcnt lgkmcnt({2*(nt-1)})")
    a.label(f"L1_loop_{tag}")
    a.emit(f"s_cmp_eq_u32 {sr(S_BUF)}, 3")
    a.emit(f"s_cselect_b32 {sr(S_DELTA)}, {(-3*STAGE) & 0xffffffff}, {sr(S_K3)}")
    a.emit(f"s_cselect_b32 {sr(S_NC)}, {(-3*2560) & 0xffffffff}, {sr(S_K4)}")
    a.emit(f"s_add_u32 {sr(S_BUF)}, {sr(S_BUF)}, 1")
    a.emit(f"s_and_b32 {sr(S_BUF)}, {sr(S_BUF)}, 3")
    for s in range(4): kstep(a, s, extra)
    a.emit(f"s_sub_u32 {sr(S_CNT)}, {sr(S_CNT)}, 1")
    a.emit(f"s_cmp_lg_u32 {sr(S_CNT)}, 0")
    a.emit(f"s_cbranch_scc1 L1_loop_{tag}")
    a.emit("s_waitcnt lgkmcnt(0)")
    stamp(a, 2, prof)
    a.emit("s_nop 7")
    a.emit("s_nop 3")

def out_base(a, ws_off, mul_rb, mul_w, mul_g):
    a.emit(f"s_mul_i32 {sr(S_T)}, {sr(S_RB)}, {mul_rb}")
    a.emit(f"s_mul_i32 {sr(S_T2)}, {sr(S_W)}, {mul_w}")
    a.emit(f"s_add_u32 {sr(S_T)}, {sr(S_T)}, {sr(S_T2)}")
    a.emit(f"s_mul_i32 {sr(S_T2)}, {sr(S_G)}, {mul_g}")
    a.emit(f"s_add_u32 {sr(S_T)}, {sr(S_T)}, {sr(S_T2)}")
    a.emit(f"s_add_u32 {sr(S_T)}, {sr(S_T)}, {ws_off}")
    a.emit(f"s_add_u32 {sr(S_O)}, {sr(S_WS)}, {sr(S_T)}")
    a.emit(f"s_addc_u32 {sr(S_O+1)}, {sr(S_WS+1)}, 0")

def epi_AQ(a):
    out_base(a, WS_QF, 4 * 16 * 3072, 16 * 3072, 4 * 3072)
    for p in range(4):
        R = ACC + 20 * p
        e = E_; o = E_ + 1; sh = E_ + 2; t = E_ + 3
        P = AF + 12 * p
        a.emit(f"v_mul_f32 {vr(e)}, {vr(R)}, {vr(R)}")
        a.emit(f"v_mul_f32 {vr(o)}, {vr(R+12)}, {vr(R+12)}")
        a.emit(f"v_mul_f32 {vr(sh)}, {vr(R+8)}, {vr(R+8)}")
        for i in range(1, 8):
            a.emit(f"v_fmac_f32 {vr(e)}, {vr(R+i)}, {vr(R+i)}")
            a.emit(f"v_fmac_f32 {vr(o)}, {vr(R+12+i)}, {vr(R+12+i)}")
            if i < 4: a.emit(f"v_fmac_f32 {vr(sh)}, {vr(R+8+i)}, {vr(R+8+i)}")
        a.emit(f"v_cndmask_b32 {vr(t)}, 0, {vr(sh)}, {sr(S_MLO,2)}")
        a.emit(f"v_add_f32 {vr(e)}, {vr(e)}, {vr(t)}")
        a.emit(f"v_cndmask_b32 {vr(t)}, 0, {vr(sh)}, {sr(S_MHI,2)}")
        a.emit(f"v_add_f32 {vr(o)}, {vr(o)}, {vr(t)}")
        for i in range(4):
            a.emit(f"v_cvt_pk_bf16_f32 {vr(P+i)}, {vr(R+2*i)}, {vr(R+2*i+1)}")
        a.emit(f"v_permlane32_swap_b32 {vr(o)}, {vr(e)}")
        for i in range(4):
            a.emit(f"v_cvt_pk_bf16_f32 {vr(P+4+i)}, {vr(R+12+2*i)}, {vr(R+12+2*i+1)}")
        a.emit(f"v_add_f32 {vr(o)}, {vr(o)}, {vr(e)}")
        a.emit(f"v_cvt_pk_bf16_f32 {vr(P+8)}, {vr(R+8)}, {vr(R+9)}")
        a.emit(f"v_sqrt_f32 {vr(P+10)}, {vr(o)}")
        a.emit(f"v_cvt_pk_bf16_f32 {vr(P+9)}, {vr(R+10)}, {vr(R+11)}")
        a.emit(f"v_mov_b32 {vr(P+11)}, 0")
        for f in range(3):
            a.emit(f"global_store_dwordx4 {vr(V_L16)}, {vr(P+4*f,4)}, {sr(S_O,2)} offset:{f*1024}")
        if p < 3:
            a.emit(f"s_add_u32 {sr(S_O)}, {sr(S_O)}, 3072")
            a.emit(f"s_addc_u32 {sr(S_O+1)}, {sr(S_O+1)}, 0")

def epi_K(a):
    R = XT
    a.emit(f"s_mov_b32 {sr(S_K1)}, {f2u(CSCALE)}")
    for i in range(12): a.emit(f"v_mul_f32 {vr(R+i)}, {sr(S_K1)}, {vr(R+i)}")
    x = E_; y = E_ + 1; t = E_ + 2; t2 = E_ + 3
    a.emit(f"v_mul_f32 {vr(x)}, {vr(R)}, {vr(R)}")
    a.emit(f"v_mul_f32 {vr(y)}, {vr(R+8)}, {vr(R+8)}")
    for i in range(1, 8): a.emit(f"v_fmac_f32 {vr(x)}, {vr(R+i)}, {vr(R+i)}")
    for i in range(1, 4): a.emit(f"v_fmac_f32 {vr(y)}, {vr(R+8+i)}, {vr(R+8+i)}")
    a.emit(f"v_cndmask_b32 {vr(y)}, 0, {vr(y)}, {sr(S_MLO,2)}")
    a.emit(f"v_add_f32 {vr(x)}, {vr(x)}, {vr(y)}")
    P = E_ + 4
    for i in range(4): a.emit(f"v_cvt_pk_bf16_f32 {vr(P+i)}, {vr(R+2*i)}, {vr(R+2*i+1)}")
    a.emit(f"v_mov_b32 {vr(t)}, {vr(x)}")
    a.emit(f"v_cvt_pk_bf16_f32 {vr(R+12)}, {vr(R+8)}, {vr(R+9)}")
    a.emit(f"v_cvt_pk_bf16_f32 {vr(R+13)}, {vr(R+10)}, {vr(R+11)}")
    a.emit(f"v_permlane32_swap_b32 {vr(t)}, {vr(x)}")
    a.emit(f"v_mov_b32 {vr(R+14)}, 0x3f803f80")
    a.emit(f"v_mov_b32 {vr(R+15)}, 0x3f80")
    a.emit(f"v_add_f32 {vr(x)}, {vr(x)}, {vr(t)}")
    a.emit(f"v_cndmask_b32 {vr(P+4)}, {vr(R+14)}, {vr(R+12)}, {sr(S_MLO,2)}")
    a.emit(f"v_cndmask_b32 {vr(P+5)}, {vr(R+15)}, {vr(R+13)}, {sr(S_MLO,2)}")
    a.emit(f"v_cndmask_b32 {vr(P+6)}, {vr(R+14)}, {vr(R+12)}, {sr(S_MHI,2)}")
    a.emit(f"v_cndmask_b32 {vr(P+7)}, {vr(R+15)}, {vr(R+13)}, {sr(S_MHI,2)}")
    out_base(a, WS_KV, 4 * 4096, 4096, 0)
    a.emit(f"global_store_dwordx4 {vr(V_L16)}, {vr(P,4)}, {sr(S_O,2)}")
    a.emit(f"global_store_dwordx4 {vr(V_L16)}, {vr(P+4,4)}, {sr(S_O,2)} offset:1024")
    for r in (8, 4, 2, 1):
        a.emit(f"v_max_f32_dpp {vr(x)}, {vr(x)}, {vr(x)} row_ror:{r} row_mask:0xf bank_mask:0xf")
        a.emit("s_nop 1")
    a.emit(f"v_readlane_b32 {sr(S_K1)}, {vr(x)}, 0")
    a.emit(f"v_readlane_b32 {sr(S_K2)}, {vr(x)}, 16")
    out_base(a, WS_KMAX, 16, 4, 0)
    a.emit(f"s_max_u32 {sr(S_K1)}, {sr(S_K1)}, {sr(S_K2)}")
    a.emit(f"v_mov_b32 {vr(t)}, {sr(S_K1)}")
    a.emit(f"v_mov_b32 {vr(t2)}, 0")
    a.emit("s_mov_b64 exec, 1")
    a.emit(f"global_store_dword {vr(t2)}, {vr(t)}, {sr(S_O,2)}")
    a.emit("s_mov_b64 exec, -1")

def epi_V(a):
    R = XT; P = E_ + 4
    n = E_; fill = E_ + 1
    a.emit(f"v_and_b32 {vr(n)}, 31, {vr(V_LANE)}")
    a.emit(f"v_cmp_eq_u32 vcc, 20, {vr(n)}")
    a.emit(f"v_mov_b32 {vr(E_+2)}, 0x3f803f80")
    for i in range(8): a.emit(f"v_cvt_pk_bf16_f32 {vr(P+i)}, {vr(R+2*i)}, {vr(R+2*i+1)}")
    a.emit(f"v_cndmask_b32 {vr(fill)}, 0, {vr(E_+2)}, vcc")
    a.emit(f"v_cmp_gt_u32 vcc, 20, {vr(n)}")
    a.emit("s_nop 1")
    for i in range(8): a.emit(f"v_cndmask_b32 {vr(P+i)}, {vr(fill)}, {vr(P+i)}, vcc")
    out_base(a, WS_KV + 2048, 4 * 4096, 4096, 0)
    a.emit(f"global_store_dwordx4 {vr(V_L16)}, {vr(P,4)}, {sr(S_O,2)}")
    a.emit(f"global_store_dwordx4 {vr(V_L16)}, {vr(P+4,4)}, {sr(S_O,2)} offset:1024")

QP = 96
PB = [0, 16]
EP = 32; EN = 42
PHI = [52, 62]
WF = [72, 78]
WPA = 84
FT = 136

def pack_pairs(a, pairs, dst):
    for n, p in enumerate(pairs):
        R = ACC + 20 * p; P = dst + 10 * n
        for i in range(4): a.emit(f"v_cvt_pk_bf16_f32 {vr(P+i)}, {vr(R+2*i)}, {vr(R+2*i+1)}")
        for i in range(4): a.emit(f"v_cvt_pk_bf16_f32 {vr(P+4+i)}, {vr(R+12+2*i)}, {vr(R+12+2*i+1)}")
        for i in range(2): a.emit(f"v_cvt_pk_bf16_f32 {vr(P+8+i)}, {vr(R+8+2*i)}, {vr(R+8+2*i+1)}")

def wphi_addr(a):
    l = V_LANE
    a.emit(f"v_bfe_u32 {vr(FT)}, {vr(l)}, 4, 1")
    a.emit(f"v_lshlrev_b32 {vr(FT)}, 2, {vr(FT)}")
    a.emit(f"v_and_b32 {vr(FT+1)}, 3, {vr(l)}")
    a.emit(f"v_add_u32 {vr(FT)}, {vr(FT)}, {vr(FT+1)}")
    a.emit(f"v_min_u32 {vr(FT)}, 4, {vr(FT)}")
    a.emit(f"v_lshlrev_b32 {vr(FT)}, 3, {vr(FT)}")
    a.emit(f"v_bfe_u32 {vr(FT+1)}, {vr(l)}, 2, 2")
    a.emit(f"v_mul_u32_u24 {vr(FT+1)}, 40, {vr(FT+1)}")
    a.emit(f"v_add_u32 {vr(FT)}, {vr(FT)}, {vr(FT+1)}")
    a.emit(f"v_add_u32 {vr(WPA+1)}, {EXTRA + 16*40}, {vr(FT)}")
    a.emit(f"v_lshrrev_b32 {vr(FT+1)}, 5, {vr(l)}")
    a.emit(f"v_mul_u32_u24 {vr(FT+1)}, 160, {vr(FT+1)}")
    a.emit(f"v_add_u32 {vr(FT)}, {vr(FT)}, {vr(FT+1)}")
    a.emit(f"v_add_u32 {vr(WPA)}, {EXTRA}, {vr(FT)}")

def wphi_read(a, hh):
    W = WF[hh & 1]
    a.emit(f"ds_read_b64_tr_b16 {vr(W,2)}, {vr(WPA)} offset:{hh*800}")
    a.emit(f"ds_read_b64_tr_b16 {vr(W+2,2)}, {vr(WPA)} offset:{hh*800+8*40}")
    a.emit(f"ds_read_b64_tr_b16 {vr(W+4,2)}, {vr(WPA+1)} offset:{hh*800}")

def phi_mfma(a, hh):
    W = WF[hh & 1]; P = PB[hh & 1]
    p = hh >> 1; Q = QP + 10 * p
    m = S_MLO if (hh & 1) == 0 else S_MHI
    a.emit("s_waitcnt lgkmcnt(0)")
    a.emit(f"v_cndmask_b32 {vr(W+4)}, 0, {vr(W+4)}, {sr(m,2)}")
    a.emit(f"v_cndmask_b32 {vr(W+5)}, 0, {vr(W+5)}, {sr(m,2)}")
    mfma(a, P, W, Q + 4 * (hh & 1), None)
    a.emit("s_nop 0")
    mfma8(a, P, W + 4, Q + 8, P)

def featmap(a, hh, out):
    P = PB[hh & 1]
    a.emit(f"v_cndmask_b32 {vr(P+8)}, {vr(P+8)}, {vr(P+10)}, {sr(S_MHI,2)}")
    a.emit(f"v_cndmask_b32 {vr(P+9)}, {vr(P+9)}, {vr(P+11)}, {sr(S_MHI,2)}")
    M = FT; N = FT + 1; T = FT + 2; T2 = FT + 3
    a.emit(f"v_max3_f32 {vr(M)}, {vr(P)}, {vr(P+1)}, {vr(P+2)}")
    a.emit(f"v_max3_f32 {vr(N)}, -{vr(P)}, -{vr(P+1)}, -{vr(P+2)}")
    for i in (3, 5, 7):
        a.emit(f"v_max3_f32 {vr(M)}, {vr(M)}, {vr(P+i)}, {vr(P+i+1)}")
        a.emit(f"v_max3_f32 {vr(N)}, {vr(N)}, -{vr(P+i)}, -{vr(P+i+1)}")
    a.emit(f"v_max_f32 {vr(M)}, {vr(M)}, {vr(P+9)}")
    a.emit(f"v_max_f32 {vr(N)}, {vr(N)}, -{vr(P+9)}")
    a.emit("s_nop 1")
    a.emit(f"v_permlane32_swap_b32 {vr(M)}, {vr(N)}")
    a.emit("s_nop 1")
    a.emit(f"v_max_f32 {vr(M)}, {vr(M)}, {vr(N)}")
    a.emit(f"v_mul_f32 {vr(M)}, {sr(S_K2)}, {vr(M)}")
    a.emit(f"v_mov_b32 {vr(N)}, {vr(M)}")
    a.emit("s_nop 1")
    a.emit(f"v_permlane32_swap_b32 {vr(M)}, {vr(N)}")
    a.emit("s_nop 1")
    for i in range(10):
        a.emit(f"v_fma_f32 {vr(EP+i)}, {vr(P+i)}, {sr(S_K1)}, {vr(M)}")
        a.emit(f"v_fma_f32 {vr(EN+i)}, {vr(P+i)}, {sr(S_K2)}, {vr(N)}")
    for i in range(10):
        a.emit(f"v_exp_f32 {vr(EP+i)}, {vr(EP+i)}")
        a.emit(f"v_exp_f32 {vr(EN+i)}, {vr(EN+i)}")
    SP = FT + 4; SN = FT + 6
    a.emit(f"v_pk_add_f32 {vr(SP,2)}, {vr(EP,2)}, {vr(EP+2,2)}")
    a.emit(f"v_pk_add_f32 {vr(SN,2)}, {vr(EN,2)}, {vr(EN+2,2)}")
    for i in (4, 6, 8):
        a.emit(f"v_pk_add_f32 {vr(SP,2)}, {vr(SP,2)}, {vr(EP+i,2)}")
        a.emit(f"v_pk_add_f32 {vr(SN,2)}, {vr(SN,2)}, {vr(EN+i,2)}")
    a.emit(f"v_add_f32 {vr(M)}, {vr(SP)}, {vr(SP+1)}")
    a.emit(f"v_add_f32 {vr(N)}, {vr(SN)}, {vr(SN+1)}")
    a.emit("s_nop 1")
    a.emit(f"v_permlane32_swap_b32 {vr(M)}, {vr(N)}")
    a.emit("s_nop 1")
    a.emit(f"v_add_f32 {vr(M)}, {vr(M)}, {vr(N)}")
    a.emit(f"v_rcp_f32 {vr(T)}, {vr(M)}")
    a.emit("s_nop 0")
    a.emit(f"v_mov_b32 {vr(T2)}, {vr(T)}")
    a.emit("s_nop 1")
    a.emit(f"v_permlane32_swap_b32 {vr(T)}, {vr(T2)}")
    a.emit("s_nop 1")
    for i in range(5):
        a.emit(f"v_pk_mul_f32 {vr(EP+2*i,2)}, {vr(EP+2*i,2)}, {vr(T,2)} op_sel_hi:[1,0]")
        a.emit(f"v_pk_mul_f32 {vr(EN+2*i,2)}, {vr(EN+2*i,2)}, {vr(T,2)} op_sel:[0,1] op_sel_hi:[1,1]")
    for i in range(5):
        a.emit(f"v_cvt_pk_bf16_f32 {vr(out+i)}, {vr(EP+2*i)}, {vr(EP+2*i+1)}")
        a.emit(f"v_cvt_pk_bf16_f32 {vr(out+5+i)}, {vr(EN+2*i)}, {vr(EN+2*i+1)}")

def consts_phi(a):
    a.emit(f"s_mov_b32 {sr(S_K1)}, {LOG2E}")
    a.emit(f"s_mov_b32 {sr(S_K2)}, {LOG2E | 0x80000000}")

def epi_Bq(a):
    pack_pairs(a, [0, 1, 2, 3], QP)
    consts_phi(a)
    wphi_addr(a)
    out_base(a, WS_PHIQ, 4 * 32 * 2560, 32 * 2560, 8 * 2560)
    a.emit(f"v_lshlrev_b32 {vr(V_T0)}, 3, {vr(V_LANE)}")
    wphi_read(a, 0)
    phi_mfma(a, 0)
    for hh in range(8):
        if hh < 7:
            wphi_read(a, hh + 1)
            phi_mfma(a, hh + 1)
            if hh == 0: a.emit("s_nop 3")
        else:
            a.emit("s_nop 7"); a.emit("s_nop 3")
        out = PHI[hh & 1]
        featmap(a, hh, out)
        a.emit(f"global_store_dwordx4 {vr(V_L16)}, {vr(out,4)}, {sr(S_O,2)}")
        a.emit(f"global_store_dwordx4 {vr(V_L16)}, {vr(out+4,4)}, {sr(S_O,2)} offset:1024")
        a.emit(f"global_store_dwordx2 {vr(V_T0)}, {vr(out+8,2)}, {sr(S_O,2)} offset:2048")
        if hh < 7:
            a.emit(f"s_add_u32 {sr(S_O)}, {sr(S_O)}, 2560")
            a.emit(f"s_addc_u32 {sr(S_O+1)}, {sr(S_O+1)}, 0")

PHI_L = 0
V_L = 40960
def epi_Bkv(a):
    pack_pairs(a, [0, 1, 2, 3], QP)
    consts_phi(a)
    wphi_addr(a)
    wphi_read(a, 0)
    a.emit("s_barrier")
    s_ = V_T0; pa = V_T1; va = V_T2
    a.emit(f"v_and_b32 {vr(s_)}, 31, {vr(V_LANE)}")
    a.emit(f"s_lshl_b32 {sr(S_T)}, {sr(S_W)}, 5")
    a.emit(f"v_add_u32 {vr(s_)}, {sr(S_T)}, {vr(s_)}")
    a.emit(f"v_lshrrev_b32 {vr(V_T3)}, 5, {vr(V_LANE)}")
    a.emit(f"v_mul_u32_u24 {vr(pa)}, 80, {vr(s_)}")
    a.emit(f"v_lshl_add_u32 {vr(pa)}, {vr(V_T3)}, 3, {vr(pa)}")
    a.emit(f"v_mul_u32_u24 {vr(va)}, 48, {vr(s_)}")
    a.emit(f"v_add_u32 {vr(va)}, {V_L}, {vr(va)}")
    a.emit(f"v_lshl_add_u32 {vr(FT+4)}, {vr(V_T3)}, 3, {vr(va)}")
    a.emit(f"v_mul_u32_u24 {vr(FT+5)}, 6144, {vr(V_T3)}")
    a.emit(f"v_add_u32 {vr(FT+5)}, {vr(FT+5)}, {vr(va)}")
    a.emit(f"v_mov_b32 {vr(FT+6)}, 0x3f80")
    a.emit(f"v_mov_b32 {vr(FT+7)}, 0")
    for pp in range(2):
        Q = QP + 10 * (2 + pp)
        for e in range(2):
            hd = 2 * pp + e
            a.emit(f"ds_write_b64 {vr(FT+4)}, {vr(Q+4*e,2)} offset:{hd*6144}")
            a.emit(f"ds_write_b64 {vr(FT+4)}, {vr(Q+4*e+2,2)} offset:{hd*6144+16}")
            a.emit(f"ds_write_b64 {vr(va)}, {vr(FT+6,2)} offset:{hd*6144+40}")
        a.emit(f"ds_write_b64 {vr(FT+5)}, {vr(Q+8,2)} offset:{2*pp*6144+32}")
    phi_mfma(a, 0)
    for hh in range(4):
        if hh < 3:
            wphi_read(a, hh + 1)
            phi_mfma(a, hh + 1)
            if hh == 0: a.emit("s_nop 3")
        else:
            a.emit("s_nop 7"); a.emit("s_nop 3")
        out = PHI[hh & 1]
        featmap(a, hh, out)
        for gm in range(5):
            col = 32 * (gm >> 2) + 8 * (gm & 3)
            a.emit(f"ds_write_b64 {vr(pa)}, {vr(out+2*gm,2)} offset:{PHI_L + hh*10240 + col*2}")
    a.emit("s_waitcnt lgkmcnt(0)")
    a.emit("s_barrier")
    l = V_LANE
    a.emit(f"v_lshrrev_b32 {vr(FT)}, 5, {vr(l)}")
    a.emit(f"v_lshlrev_b32 {vr(FT)}, 3, {vr(FT)}")
    a.emit(f"v_bfe_u32 {vr(FT+1)}, {vr(l)}, 2, 2")
    a.emit(f"v_add_u32 {vr(FT)}, {vr(FT)}, {vr(FT+1)}")
    a.emit(f"v_bfe_u32 {vr(FT+1)}, {vr(l)}, 4, 1")
    a.emit(f"v_lshlrev_b32 {vr(FT+1)}, 5, {vr(FT+1)}")
    a.emit(f"v_and_b32 {vr(FT+2)}, 3, {vr(l)}")
    a.emit(f"v_lshl_add_u32 {vr(FT+1)}, {vr(FT+2)}, 3, {vr(FT+1)}")
    a.emit(f"v_mul_u32_u24 {vr(FT+2)}, 80, {vr(FT)}")
    a.emit(f"v_add_u32 {vr(FT+2)}, {vr(FT+2)}, {vr(FT+1)}")
    a.emit(f"s_mul_i32 {sr(S_T)}, {sr(S_W)}, 10240")
    a.emit(f"v_add_u32 {vr(FT+2)}, {sr(S_T)}, {vr(FT+2)}")
    a.emit(f"v_mul_u32_u24 {vr(FT+3)}, 48, {vr(FT)}")
    a.emit(f"v_add_u32 {vr(FT+3)}, {vr(FT+3)}, {vr(FT+1)}")
    a.emit(f"s_mul_i32 {sr(S_T)}, {sr(S_W)}, 6144")
    a.emit(f"s_add_u32 {sr(S_T)}, {sr(S_T)}, {V_L}")
    a.emit(f"v_add_u32 {vr(FT+3)}, {sr(S_T)}, {vr(FT+3)}")
    F = 64
    def rd(ks):
        b = F + 12 * (ks & 1)
        a.emit(f"ds_read_b64_tr_b16 {vr(b,2)}, {vr(FT+2)} offset:{ks*16*80}")
        a.emit(f"ds_read_b64_tr_b16 {vr(b+2,2)}, {vr(FT+2)} offset:{ks*16*80+4*80}")
        a.emit(f"ds_read_b64_tr_b16 {vr(b+4,2)}, {vr(FT+2)} offset:{ks*16*80+64}")
        a.emit(f"ds_read_b64_tr_b16 {vr(b+6,2)}, {vr(FT+2)} offset:{ks*16*80+4*80+64}")
        a.emit(f"ds_read_b64_tr_b16 {vr(b+8,2)}, {vr(FT+3)} offset:{ks*16*48}")
        a.emit(f"ds_read_b64_tr_b16 {vr(b+10,2)}, {vr(FT+3)} offset:{ks*16*48+4*48}")
    rd(0)
    for ks in range(8):
        if ks < 7:
            rd(ks + 1)
            a.emit("s_waitcnt lgkmcnt(6)")
        else:
            a.emit("s_waitcnt lgkmcnt(0)")
        b = F + 12 * (ks & 1)
        mfma(a, 0, b, b + 8, None if ks == 0 else 0)
        mfma(a, 16, b + 4, b + 8, None if ks == 0 else 16)
    out_base(a, WS_KVP, 32 * 5120, 5120, 4 * 5120)
    a.emit("s_nop 7"); a.emit("s_nop 3")
    for i in range(5):
        if i == 4:
            a.emit(f"s_add_u32 {sr(S_O)}, {sr(S_O)}, 4096")
            a.emit(f"s_addc_u32 {sr(S_O+1)}, {sr(S_O+1)}, 0")
        a.emit(f"global_store_dwordx4 {vr(V_L16)}, {vr(4*i,4)}, {sr(S_O,2)} offset:{(i%4)*1024}")

def gen_proj(name="proj_kernel", prof=False, ntx=0, ntw=0, ahead=2):
    a = Asm()
    a(f".p2align 8\n.globl {name}\n.type {name},@function")
    a.label(name)
    a.emit("s_cmp_ge_u32 s2, 256")
    a.emit(f"s_cbranch_scc1 {name}_end")
    stamp(a, 0, prof)
    a.emit(f"s_load_dwordx2 {sr(S_WS,2)}, s[0:1], 88")
    a.emit("s_load_dwordx4 s[44:47], s[0:1], 0")
    a.emit("s_load_dwordx4 s[48:51], s[0:1], 16")
    a.emit("s_load_dwordx4 s[52:55], s[0:1], 40")
    a.emit("s_load_dwordx2 s[56:57], s[0:1], 56")
    a.emit(f"v_lshrrev_b32 {vr(V_T0)}, 6, v0")
    a.emit(f"v_and_b32 {vr(V_LANE)}, 63, v0")
    a.emit(f"v_readfirstlane_b32 {sr(S_W)}, {vr(V_T0)}")
    a.emit(f"v_lshlrev_b32 {vr(V_L16)}, 4, {vr(V_LANE)}")
    ids(a)
    a.emit(f"s_mov_b32 {sr(S_MLO)}, -1"); a.emit(f"s_mov_b32 {sr(S_MLO+1)}, 0")
    a.emit(f"s_mov_b32 {sr(S_MHI)}, 0"); a.emit(f"s_mov_b32 {sr(S_MHI+1)}, -1")
    a.emit(f"s_cmp_ge_u32 {sr(S_W)}, 4")
    a.emit(f"s_cbranch_scc1 {name}_loader")
    l = V_LANE
    a.emit(f"v_and_b32 {vr(V_T0)}, 31, {vr(l)}")
    a.emit(f"v_bfe_u32 {vr(V_T1)}, {vr(l)}, 1, 3")
    a.emit(f"v_lshrrev_b32 {vr(V_T2)}, 5, {vr(l)}")
    a.emit(f"v_lshlrev_b32 {vr(V_T0)}, 7, {vr(V_T0)}")
    a.emit(f"s_lshl_b32 {sr(S_T)}, {sr(S_W)}, 12")
    a.emit(f"v_add_u32 {vr(V_T0)}, {sr(S_T)}, {vr(V_T0)}")
    for s in range(4):
        a.emit(f"v_add_u32 {vr(V_T3)}, {2*s}, {vr(V_T2)}")
        a.emit(f"v_xor_b32 {vr(V_T3)}, {vr(V_T3)}, {vr(V_T1)}")
        a.emit(f"v_lshl_add_u32 {vr(XA+s)}, {vr(V_T3)}, 4, {vr(V_T0)}")
    a.emit(f"v_lshrrev_b32 {vr(V_T0)}, 5, {vr(l)}")
    a.emit(f"v_lshlrev_b32 {vr(V_T0)}, 3, {vr(V_T0)}")
    a.emit(f"v_bfe_u32 {vr(V_T1)}, {vr(l)}, 2, 2")
    a.emit(f"v_add_u32 {vr(V_T0)}, {vr(V_T0)}, {vr(V_T1)}")
    a.emit(f"v_mul_u32_u24 {vr(E_)}, 320, {vr(V_T0)}")
    a.emit(f"v_add_u32 {vr(E_)}, {XS}, {vr(E_)}")
    a.emit(f"v_mul_u32_u24 {vr(E_+1)}, 40, {vr(V_T0)}")
    a.emit(f"v_add_u32 {vr(E_+1)}, {EXTRA}, {vr(E_+1)}")
    a.emit(f"v_bfe_u32 {vr(V_T1)}, {vr(l)}, 4, 1")
    a.emit(f"v_lshlrev_b32 {vr(V_T1)}, 1, {vr(V_T1)}")
    a.emit(f"v_bfe_u32 {vr(V_T2)}, {vr(l)}, 1, 1")
    a.emit(f"v_add_u32 {vr(V_T1)}, {vr(V_T1)}, {vr(V_T2)}")
    a.emit(f"v_and_b32 {vr(V_T2)}, 1, {vr(l)}")
    a.emit(f"v_lshl_add_u32 {vr(V_T3)}, {vr(V_T1)}, 1, {vr(V_T2)}")
    a.emit(f"v_min_u32 {vr(V_T3)}, 4, {vr(V_T3)}")
    a.emit(f"v_lshl_add_u32 {vr(WA+5)}, {vr(V_T3)}, 3, {vr(E_+1)}")
    for t in range(5):
        rho = E_ + 2; p = E_ + 3; u = E_ + 4; G = E_ + 5; x = E_ + 6
        a.emit(f"v_add_u32 {vr(rho)}, {4*t}, {vr(V_T1)}")
        a.emit(f"v_mul_u32_u24 {vr(p)}, 13, {vr(rho)}")
        a.emit(f"v_lshrrev_b32 {vr(p)}, 6, {vr(p)}")
        a.emit(f"v_mul_u32_u24 {vr(u)}, 5, {vr(p)}")
        a.emit(f"v_sub_u32 {vr(u)}, {vr(rho)}, {vr(u)}")
        a.emit(f"v_lshl_add_u32 {vr(G)}, {vr(u)}, 1, {vr(V_T2)}")
        a.emit(f"v_cmp_lt_u32 vcc, 2, {vr(u)}")
        a.emit(f"v_lshlrev_b32 {vr(x)}, 2, {vr(V_T2)}")
        a.emit(f"v_subrev_u32 {vr(rho)}, 1, {vr(G)}")
        a.emit(f"v_cndmask_b32 {vr(G)}, {vr(G)}, {vr(rho)}, vcc")
        a.emit(f"v_cmp_eq_u32 vcc, 2, {vr(u)}")
        a.emit(f"v_add_u32 {vr(x)}, {vr(x)}, {vr(G)}")
        a.emit(f"v_mul_u32_u24 {vr(p)}, 10, {vr(p)}")
        a.emit(f"v_cndmask_b32 {vr(G)}, {vr(G)}, {vr(x)}, vcc")
        a.emit(f"v_add_u32 {vr(G)}, {vr(G)}, {vr(p)}")
        a.emit(f"v_lshl_add_u32 {vr(WA+t)}, {vr(G)}, 3, {vr(E_)}")
    for i in range(4): a.emit(f"v_mov_b32 {vr(BFR+i)}, 0")
    a.emit("s_nop 1")
    for t in range(6): mfma(a, ACC + 16 * t, BFR, BFR, None)
    a.emit("s_waitcnt lgkmcnt(0)")
    a.emit(f"s_cmp_eq_u32 {sr(S_ROLE)}, 1")
    a.emit(f"s_cbranch_scc1 {name}_mainK")
    a.emit(f"s_cmp_eq_u32 {sr(S_ROLE)}, 2")
    a.emit(f"s_cbranch_scc1 {name}_mainV")
    mainloop(a, "P", None, prof)
    a.emit(f"s_cmp_eq_u32 {sr(S_ROLE)}, 3")
    a.emit(f"s_cbranch_scc1 {name}_epiBq")
    a.emit(f"s_cmp_eq_u32 {sr(S_ROLE)}, 4")
    a.emit(f"s_cbranch_scc1 {name}_epiBkv")
    a.label(f"{name}_epiAQ")
    epi_AQ(a)
    a.emit("s_barrier"); a.emit("s_barrier")
    a.emit(f"s_branch {name}_fin")
    a.label(f"{name}_mainK")
    mainloop(a, "K", 'K', prof)
    epi_K(a)
    a.emit(f"s_branch {name}_epiAQ")
    a.label(f"{name}_mainV")
    mainloop(a, "V", 'V', prof)
    epi_V(a)
    a.emit(f"s_branch {name}_epiAQ")
    a.label(f"{name}_epiBq")
    epi_Bq(a)
    a.emit("s_barrier"); a.emit("s_barrier")
    a.emit(f"s_branch {name}_fin")
    a.label(f"{name}_epiBkv")
    epi_Bkv(a)
    a.label(f"{name}_fin")
    stamp(a, 3, prof)
    stamp_store(a, prof, S_WS, S_W, V_T0, V_T1, 8, WS_PROF)
    a.emit("s_endpgm")
    a.label(f"{name}_loader")
    a.emit(f"s_sub_u32 {sr(S_W)}, {sr(S_W)}, 4")
    for n in range(4):
        a.emit(f"v_lshrrev_b32 {vr(V_T0)}, 3, {vr(l)}")
        a.emit(f"v_add_u32 {vr(V_T0)}, {8*n}, {vr(V_T0)}")
        a.emit(f"v_bfe_u32 {vr(V_T1)}, {vr(V_T0)}, 1, 3")
        a.emit(f"v_and_b32 {vr(V_T2)}, 7, {vr(l)}")
        a.emit(f"v_xor_b32 {vr(V_T1)}, {vr(V_T1)}, {vr(V_T2)}")
        a.emit(f"v_mul_u32_u24 {vr(V_T0)}, 1280, {vr(V_T0)}")
        a.emit(f"v_lshl_add_u32 {vr(V_LO+n)}, {vr(V_T1)}, 4, {vr(V_T0)}")
    a.emit("s_waitcnt lgkmcnt(0)")
    a.emit(f"s_cmp_lt_u32 {sr(S_ROLE)}, 3")
    a.emit(f"s_cselect_b32 {sr(S_X)}, s44, s52")
    a.emit(f"s_cselect_b32 {sr(S_X+1)}, s45, s53")
    a.emit(f"s_cselect_b32 {sr(S_WB)}, s46, s54")
    a.emit(f"s_cselect_b32 {sr(S_WB+1)}, s47, s55")
    a.emit(f"s_mov_b32 {sr(S_WADV)}, 3840")
    a.emit(f"s_cselect_b32 {sr(S_WADV)}, 1280, {sr(S_WADV)}")
    a.emit(f"s_lshl_b32 {sr(S_T)}, {sr(S_RB)}, 2")
    a.emit(f"s_add_u32 {sr(S_T)}, {sr(S_T)}, {sr(S_W)}")
    a.emit(f"s_mul_i32 {sr(S_T)}, {sr(S_T)}, {32*1280}")
    a.emit(f"s_add_u32 {sr(S_X)}, {sr(S_X)}, {sr(S_T)}")
    a.emit(f"s_addc_u32 {sr(S_X+1)}, {sr(S_X+1)}, 0")
    a.emit(f"s_cmp_eq_u32 {sr(S_ROLE)}, 4")
    a.emit(f"s_cselect_b32 {sr(S_T2)}, 1120, 0")
    for n in range(5):
        a.emit(f"v_add_u32 {vr(V_T0)}, {64*n}, {vr(l)}")
        div20(a, V_T1, V_T2, V_T0)
        a.emit(f"v_mul_lo_u32 {vr(V_T1)}, {vr(V_T1)}, {sr(S_WADV)}")
        a.emit(f"v_lshl_add_u32 {vr(V_T1)}, {vr(V_T2)}, 4, {vr(V_T1)}")
        a.emit(f"v_cmp_le_u32 vcc, 10, {vr(V_T2)}")
        a.emit(f"v_mov_b32 {vr(V_T3)}, {sr(S_T2)}")
        a.emit("s_nop 0")
        a.emit(f"v_cndmask_b32 {vr(V_T3)}, 0, {vr(V_T3)}, vcc")
        a.emit(f"v_add_u32 {vr(V_LO+4+n)}, {vr(V_T1)}, {vr(V_T3)}")
    a.emit(f"s_mul_i32 {sr(S_T)}, {sr(S_W)}, {sr(S_WADV)}")
    a.emit(f"s_lshl_b32 {sr(S_T)}, {sr(S_T)}, 4")
    a.emit(f"s_mul_i32 {sr(S_T2)}, {sr(S_G)}, 320")
    a.emit(f"s_mul_i32 {sr(S_K1)}, {sr(S_G)}, 160")
    a.emit(f"s_add_u32 {sr(S_K1)}, {sr(S_K1)}, 1280")
    a.emit(f"s_cmp_eq_u32 {sr(S_ROLE)}, 4")
    a.emit(f"s_cselect_b32 {sr(S_T2)}, {sr(S_K1)}, {sr(S_T2)}")
    a.emit(f"s_add_u32 {sr(S_T)}, {sr(S_T)}, {sr(S_T2)}")
    a.emit(f"s_add_u32 {sr(S_WB)}, {sr(S_WB)}, {sr(S_T)}")
    a.emit(f"s_addc_u32 {sr(S_WB+1)}, {sr(S_WB+1)}, 0")
    a.emit(f"s_lshl_b32 {sr(S_WADV)}, {sr(S_WADV)}, 6")
    a.emit(f"s_lshl_b32 {sr(S_M0X)}, {sr(S_W)}, 12")
    a.emit(f"s_mul_i32 {sr(S_M0W)}, {sr(S_W)}, 5120")
    a.emit(f"s_add_u32 {sr(S_M0W)}, {sr(S_M0W)}, {XS}")
    a.emit(f"s_min_u32 {sr(S_T)}, {sr(S_W)}, 2")
    a.emit(f"s_lshl_b32 {sr(S_M0E)}, {sr(S_T)}, 10")
    a.emit(f"v_add_u32 {vr(V_LO+9)}, {sr(S_M0E)}, {vr(V_L16)}")
    a.emit(f"s_add_u32 {sr(S_M0E)}, {sr(S_M0E)}, {EXTRA}")
    a.emit(f"s_cmp_lt_u32 {sr(S_W)}, 2")
    a.emit(f"s_cselect_b32 {sr(S_EXM+1)}, -1, 0")
    a.emit(f"s_mov_b32 {sr(S_EXM)}, -1")
    a.emit(f"s_cmp_eq_u32 {sr(S_ROLE)}, 1")
    a.emit(f"s_cselect_b32 {sr(S_EX)}, s48, s50")
    a.emit(f"s_cselect_b32 {sr(S_EX+1)}, s49, s51")
    a.emit(f"s_lshl_b32 {sr(S_T)}, {sr(S_ROT)}, 7")
    a.emit(f"s_add_u32 {sr(S_X)}, {sr(S_X)}, {sr(S_T)}")
    a.emit(f"s_addc_u32 {sr(S_X+1)}, {sr(S_X+1)}, 0")
    a.emit(f"s_mul_i32 {sr(S_T)}, {sr(S_ROT)}, {sr(S_WADV)}")
    a.emit(f"s_add_u32 {sr(S_WB)}, {sr(S_WB)}, {sr(S_T)}")
    a.emit(f"s_addc_u32 {sr(S_WB+1)}, {sr(S_WB+1)}, 0")
    a.emit(f"s_mul_i32 {sr(S_T)}, {sr(S_ROT)}, 2560")
    a.emit(f"s_add_u32 {sr(S_EX)}, {sr(S_EX)}, {sr(S_T)}")
    a.emit(f"s_addc_u32 {sr(S_EX+1)}, {sr(S_EX+1)}, 0")
    a.emit(f"s_mov_b32 {sr(S_KC)}, {sr(S_ROT)}")
    a.emit(f"s_mul_i32 {sr(S_K2)}, {sr(S_WADV)}, -9")
    def chunk(c, extra):
        buf = c % 4
        if c > 0:
            a.emit(f"s_add_u32 {sr(S_KC)}, {sr(S_KC)}, 1")
            a.emit(f"s_cmp_eq_u32 {sr(S_KC)}, 10")
            a.emit(f"s_cselect_b32 {sr(S_KC)}, 0, {sr(S_KC)}")
            a.emit(f"s_cselect_b32 {sr(S_T)}, {-9*128}, {sr(S_K3)}")
            a.emit(f"s_cselect_b32 {sr(S_T2)}, {sr(S_K2)}, {sr(S_WADV)}")
            a.emit(f"s_cselect_b32 {sr(S_K1)}, {-9*2560}, {sr(S_K4)}")
            a.emit(f"s_ashr_i32 {sr(S_ROT)}, {sr(S_T)}, 31")
            a.emit(f"s_add_u32 {sr(S_X)}, {sr(S_X)}, {sr(S_T)}")
            a.emit(f"s_addc_u32 {sr(S_X+1)}, {sr(S_X+1)}, {sr(S_ROT)}")
            a.emit(f"s_add_u32 {sr(S_WB)}, {sr(S_WB)}, {sr(S_T2)}")
            a.emit(f"s_addc_u32 {sr(S_WB+1)}, {sr(S_WB+1)}, {sr(S_ROT)}")
        for n in range(5):
            a.emit(f"s_add_u32 m0, {sr(S_M0W)}, {buf*STAGE + n*1024}")
            a.emit("s_nop 0")
            a.emit(f"global_load_lds_dwordx4 {vr(V_LO+4+n)}, {sr(S_WB,2)}" + (" nt" if ntw else ""))
        for n in range(4):
            a.emit(f"s_add_u32 m0, {sr(S_M0X)}, {buf*STAGE + n*1024}")
            a.emit("s_nop 0")
            a.emit(f"global_load_lds_dwordx4 {vr(V_LO+n)}, {sr(S_X,2)}" + (" nt" if ntx else ""))
        if extra:
            if c > 0:
                a.emit(f"s_add_u32 {sr(S_EX)}, {sr(S_EX)}, {sr(S_K1)}")
                a.emit(f"s_addc_u32 {sr(S_EX+1)}, {sr(S_EX+1)}, {sr(S_ROT)}")
            a.emit(f"s_add_u32 m0, {sr(S_M0E)}, {buf*2560}")
            a.emit(f"s_mov_b64 exec, {sr(S_EXM,2)}")
            a.emit(f"global_load_lds_dwordx4 {vr(V_LO+9)}, {sr(S_EX,2)}")
            a.emit("s_mov_b64 exec, -1")
    def loader(extra):
        n = 10 if extra else 9
        a.emit(f"s_mov_b32 {sr(S_K3)}, 128")
        a.emit(f"s_mov_b32 {sr(S_K4)}, 2560")
        issued = []
        if ahead == 2:
            pre = [0, 1]; nxt = lambda c: c + 2
        else:
            pre = [0, 1, 2]; nxt = lambda c: c + 2 if c >= 1 else None
        for c in pre: chunk(c, extra); issued.append(c)
        for c in range(10):
            after = len([x for x in issued if x > c])
            a.emit(f"s_waitcnt vmcnt({n*after})")
            a.emit("s_barrier")
            k = nxt(c)
            if k is not None and k < 10 and k not in issued: chunk(k, extra); issued.append(k)
        a.emit("s_barrier")
        a.emit("s_barrier"); a.emit("s_barrier")
        a.emit("s_endpgm")
    a.emit(f"s_cmp_eq_u32 {sr(S_ROLE)}, 1")
    a.emit(f"s_cbranch_scc1 {name}_ldx")
    a.emit(f"s_cmp_eq_u32 {sr(S_ROLE)}, 2")
    a.emit(f"s_cbranch_scc1 {name}_ldx")
    a.emit(f"s_cmp_lt_u32 {sr(S_ROLE)}, 3")
    a.emit(f"s_cbranch_scc1 {name}_ldp")
    a.emit(f"s_cmp_eq_u32 {sr(S_ROLE)}, 3")
    a.emit(f"s_mov_b32 {sr(S_T)}, 3200")
    a.emit(f"s_cselect_b32 {sr(S_T)}, 6400, {sr(S_T)}")
    a.emit(f"s_mul_i32 {sr(S_T)}, {sr(S_T)}, {sr(S_G)}")
    for rep in range(2):
        a.emit(f"s_lshl_b32 {sr(S_T2)}, {sr(S_W)}, 10")
        a.emit(f"s_add_u32 {sr(S_T2)}, {sr(S_T2)}, {rep*4096}")
        a.emit(f"s_add_u32 m0, {sr(S_T2)}, {EXTRA}")
        a.emit(f"s_add_u32 {sr(S_T2)}, {sr(S_T2)}, {sr(S_T)}")
        a.emit(f"v_add_u32 {vr(V_T0)}, {sr(S_T2)}, {vr(V_L16)}")
        a.emit(f"v_min_u32 {vr(V_T0)}, 25584, {vr(V_T0)}")
        a.emit(f"global_load_lds_dwordx4 {vr(V_T0)}, s[56:57]")
    a.label(f"{name}_ldp")
    loader(False)
    a.label(f"{name}_ldx")
    loader(True)
    a.label(f"{name}_end")
    a.emit("s_endpgm")
    desc = f"""
.amdhsa_kernel {name}
  .amdhsa_next_free_vgpr {NV}
  .amdhsa_next_free_sgpr 100
  .amdhsa_accum_offset {NV}
  .amdhsa_group_segment_fixed_size 0
  .amdhsa_kernarg_size 96
  .amdhsa_user_sgpr_count 2
  .amdhsa_user_sgpr_kernarg_segment_ptr 1
  .amdhsa_system_sgpr_workgroup_id_x 1
.end_amdhsa_kernel
"""
    launch = f"; @launch kernel={name} grid=(256,1,1) block=(512,1,1) lds={LDS_BYTES}"
    return a.text(), desc, launch
```

```python
import sys
from asm import check_hazards, fix_hazards
import attn, oproj
HDR = open("concat_heads__grouped_kv_mqa__linear_kernel_hedgehog__prompt.s.ref").read().split("; Override")[0]
def build(parts, out):
    txt = HDR
    for t, d, l in parts: txt += l + "\n"
    txt += '.amdgcn_target "amdgcn-amd-amdhsa--gfx950"\n.text\n'
    for t, d, l in parts:
        t, nf = fix_hazards(t)
        check_hazards(t)
        txt += t + "\n"
    txt += '.section .rodata,"a"\n'
    for t, d, l in parts: txt += ".p2align 6\n" + d
    open(out, "w").write(txt)
if __name__ == "__main__":
    kw = {}
    which = sys.argv[2].split(",")
    for x in sys.argv[3:]:
        if "=" in x:
            k, v = x.split("="); kw[k] = int(v)
    parts = []
    import inspect
    for w in which:
        import fused
        f = {"attn": attn.gen_attn, "oproj": oproj.gen_oproj, "fused": fused.gen_fused}.get(w)
        if f is None:
            import proj; f = proj.gen_proj
        sig = inspect.signature(f).parameters
        parts.append(f(**{k: v for k, v in kw.items() if k in sig}))
    build(parts, sys.argv[1])
```

```python
import re

class Asm:
    def __init__(self):
        self.lines = []
    def __call__(self, s=""):
        for l in s.split("\n"):
            self.lines.append(l)
    def emit(self, s):
        self.lines.append("    " + s)
    def label(self, s):
        self.lines.append(s + ":")
    def comment(self, s):
        self.lines.append("    ; " + s)
    def text(self):
        return "\n".join(self.lines) + "\n"

def vr(base, n=1):
    return f"v{base}" if n == 1 else f"v[{base}:{base+n-1}]"
def sr(base, n=1):
    return f"s{base}" if n == 1 else f"s[{base}:{base+n-1}]"

_reg_re = re.compile(r"\b([vsa])(\d+)\b|\b([vsa])\[(\d+):(\d+)\]")
def regs_of(op):
    out = []
    for m in _reg_re.finditer(op):
        if m.group(1):
            out.append((m.group(1), int(m.group(2))))
        else:
            for i in range(int(m.group(4)), int(m.group(5)) + 1):
                out.append((m.group(3), i))
    if "vcc" in op: out.append(("s", "vcc"))
    if re.search(r"\bexec\b", op): out.append(("s", "exec"))
    if re.search(r"\bm0\b", op): out.append(("s", "m0"))
    return out

TRANS = ("v_exp_f32", "v_log_f32", "v_rcp_f32", "v_rsq_f32", "v_sqrt_f32", "v_sin_f32", "v_cos_f32", "v_exp_f16", "v_rcp_iflag_f32")

def parse(line):
    l = line.split(";")[0].strip()
    if not l or l.endswith(":") or l.startswith("."):
        return None
    parts = l.split(None, 1)
    op = parts[0]
    args = [a.strip() for a in parts[1].split(",")] if len(parts) > 1 else []
    return op, args, l

def classify(op, args):
    d = dict(op=op, kind="other", dst=[], src=[], states=1)
    base = op.replace("_e32", "").replace("_e64", "").replace("_dpp", "").replace("_sdwa", "")
    if op == "s_nop":
        d["states"] = int(args[0], 0) + 1
        d["kind"] = "nop"
        return d
    if op.startswith("v_mfma"):
        d["kind"] = "mfma"
        d["dst"] = regs_of(args[0]); d["A"] = regs_of(args[1]); d["B"] = regs_of(args[2]); d["C"] = regs_of(args[3])
        d["src"] = d["A"] + d["B"] + d["C"]
        d["passes"] = 8 if "32x32" in op else 4
        return d
    if op.startswith("v_"):
        d["kind"] = "valu"
        if base.startswith("v_cmp"):
            d["dst"] = regs_of(args[0]); d["src"] = sum((regs_of(a) for a in args[1:]), [])
            if base.startswith("v_cmpx"): d["dst"].append(("s", "exec"))
        elif base.startswith("v_permlane32_swap") or base.startswith("v_permlane16_swap"):
            d["dst"] = regs_of(args[0]) + regs_of(args[1]); d["src"] = list(d["dst"]); d["kind"] = "permlane"
        elif base in ("v_readfirstlane_b32", "v_readlane_b32"):
            d["dst"] = regs_of(args[0]); d["src"] = sum((regs_of(a) for a in args[1:]), []); d["kind"] = "readlane"
        else:
            d["dst"] = regs_of(args[0])
            rest = args[1:]
            if base in ("v_add_co_u32", "v_sub_co_u32", "v_addc_co_u32", "v_subb_co_u32", "v_div_scale_f32"):
                d["dst"] += regs_of(args[1]); rest = args[2:]
            d["src"] = sum((regs_of(a) for a in rest), [])
            if base in ("v_fmac_f32", "v_pk_fmac_f16", "v_writelane_b32") or "row_" in " ".join(args) or "UNUSED_PRESERVE" in " ".join(args):
                d["src"] += regs_of(args[0])
            if base == "v_cndmask_b32" and len(args) == 3: d["src"].append(("s", "vcc"))
            if "dpp" in op or "row_" in " ".join(args) or "quad_perm" in " ".join(args): d["dpp"] = True
        if base in TRANS: d["trans"] = True
        return d
    if op.startswith("ds_") or op.startswith("global_") or op.startswith("buffer_") or op.startswith("flat_"):
        d["kind"] = "mem"
        allr = [regs_of(a.split(" ")[0]) for a in args]
        isload = ("load" in op or "read" in op or "bpermute" in op or "swizzle" in op or "permute" in op) and "lds" not in op.split("_")[2:3] and not (op.startswith("buffer_load") and args and args[-1].endswith("lds"))
        if op.startswith("global_load_lds"): isload = False
        if "atomic" in op and "sc0" in " ".join(args): isload = True
        if isload:
            d["dst"] = allr[0]; d["src"] = sum(allr[1:], [])
        else:
            d["src"] = sum(allr, [])
        d["isstore"] = ("store" in op or "write" in op)
        d["wide"] = ("x4" in op or "x3" in op or "b128" in op or "b96" in op)
        d["lds_dma"] = op.startswith("global_load_lds") or (op.startswith("buffer_load") and " ".join(args).rstrip().endswith("lds"))
        return d
    if op.startswith("s_"):
        d["kind"] = "salu"
        if op.startswith("s_cmp") or op.startswith("s_cbranch") or op.startswith("s_branch") or op in ("s_waitcnt", "s_barrier", "s_endpgm", "s_setprio", "s_sleep"):
            d["src"] = sum((regs_of(a) for a in args), [])
        else:
            d["dst"] = regs_of(args[0]) if args else []
            d["src"] = sum((regs_of(a) for a in args[1:]), [])
            if "saveexec" in op: d["dst"].append(("s", "exec"))
        return d
    return d

def _deficit(ins, j):
    c = ins[j]
    sset = set(c["src"]); dset = set(c["dst"])
    best = (0, None)
    st = 0
    W = 24
    def need(i, n, why):
        nonlocal best
        if n - st > best[0]: best = (n - st, f"line {c['line']}: '{c['text']}' needs {n} after line {ins[i]['line']} '{ins[i]['text']}' (has {st}): {why}")
    for i in range(j - 1, max(-1, j - W), -1):
        p = ins[i]
        if p["op"] == "s_endpgm": break
        pd = set(p["dst"])
        pv = {r for r in pd if r[0] in "va"}; ps = {r for r in pd if r[0] == "s"}
        if p["kind"] in ("valu", "permlane", "readlane"):
            if c["kind"] == "mfma" and pv & sset: need(i, 2, "VALU write -> MFMA read")
            if c["kind"] == "mfma" and ("s", "exec") in pd: need(i, 4, "VALU exec write -> MFMA")
            if c["kind"] == "permlane" and pv & sset: need(i, 2, "VALU write -> permlane")
            if c["kind"] == "readlane" and pv & sset: need(i, 1, "VALU write -> readlane")
            if c.get("dpp") and pv & sset: need(i, 2, "VALU write -> DPP read")
            if c.get("dpp") and ("s", "exec") in pd: need(i, 5, "VALU exec write -> DPP")
            if p.get("trans") and c["kind"] in ("valu", "permlane", "readlane", "mfma") and not c.get("trans") and pv & sset: need(i, 1, "trans -> VALU")
            if ps & sset:
                if c["kind"] == "mem": need(i, 5, "VALU sgpr write -> VMEM read")
                elif c["kind"] == "valu": need(i, 2, "VALU sgpr write -> VALU read")
                elif c["kind"] == "readlane": need(i, 4, "VALU sgpr write -> lane select")
                elif c["kind"] == "permlane" and ("s", "exec") in pd: need(i, 4, "cmpx->permlane")
            if ("s", "exec") in pd and c["kind"] in ("readlane",): need(i, 4, "exec write -> readlane")
        if p["kind"] == "mfma":
            np_ = p["passes"]
            raw = {2: 5, 4: 8, 8: 12, 16: 20}[np_]
            if c["kind"] == "mfma":
                if pd & (set(c["A"]) | set(c["B"])): need(i, raw, "MFMA D -> MFMA A/B")
                if pd & set(c["C"]) and not (pd == set(c["C"]) and c["passes"] == np_): need(i, {4: 6, 8: 10}[np_], "MFMA D -> MFMA C overlap")
                if pd & set(c["dst"]) and not (pd & set(c["C"])): need(i, {4: 6, 8: 10}[np_], "MFMA D -> MFMA D WAW (conservative)")
            elif c["kind"] in ("valu", "permlane", "readlane", "mem"):
                if pd & (sset | dset): need(i, raw, "MFMA D -> VALU/mem read/write")
            if c["kind"] in ("valu", "permlane") and set(p["C"]) & dset: need(i, {4: 3, 8: 7}[np_], "MFMA reads C -> VALU write WAR")
        if p["kind"] == "mem" and p.get("isstore") and p.get("wide") and p["op"].startswith(("global", "buffer", "flat")):
            if c["kind"] in ("valu", "permlane", "mfma") and set(p["src"]) & dset: need(i, 2, "wide store data WAR")
        if p["kind"] == "salu" and ("s", "m0") in pd and c["kind"] == "mem" and c.get("lds_dma"): need(i, 1, "m0 write -> LDS DMA")
        st += p["states"]
    return best

def _parse_all(text):
    ins = []
    for n, line in enumerate(text.split("\n"), 1):
        p = parse(line)
        if p is None: continue
        c = classify(p[0], p[1]); c["line"] = n; c["text"] = p[2]
        ins.append(c)
    return ins

def check_hazards(text, verbose=True):
    ins = _parse_all(text)
    probs = []
    for j in range(len(ins)):
        d, why = _deficit(ins, j)
        if d > 0: probs.append(why)
    if verbose:
        for x in probs: print("HAZARD:", x)
    return probs

def fix_hazards(text):
    out_lines = []
    ins = []
    nfix = 0
    for n, line in enumerate(text.split("\n"), 1):
        p = parse(line)
        if p is None:
            out_lines.append(line); continue
        c = classify(p[0], p[1]); c["line"] = n; c["text"] = p[2]
        ins.append(c)
        d, why = _deficit(ins, len(ins) - 1)
        if d > 0:
            ins.pop()
            k = d
            while k > 0:
                m = min(k, 16)
                out_lines.append(f"    s_nop {m-1}")
                nop = classify("s_nop", [str(m - 1)]); nop["line"] = n; nop["text"] = "s_nop"
                ins.append(nop); k -= m
            ins.append(c); nfix += 1
        out_lines.append(line)
    return "\n".join(out_lines), nfix

def interleave(*streams):
    streams = [list(s) for s in streams]
    tot = max(len(s) for s in streams)
    out = []
    pos = [0] * len(streams)
    for step in range(1, tot + 1):
        for i, s in enumerate(streams):
            tgt = (step * len(s) + tot - 1) // tot
            while pos[i] < min(tgt, len(s)):
                out.append(s[pos[i]]); pos[i] += 1
    return out

PROFSETS = {
    1: {"start": 0, "P1B0": 1, "P1main": 2, "arr0": 3, "loop": 4, "loopend": 5, "P3B0": 6, "end": 7},
    2: {"start": 0, "P1main": 1, "P1epi": 2, "P1vm": 3, "arr0": 4, "wait0": 5, "loop": 6, "end": 7},
    3: {"start": 0, "loopend": 1, "redbar": 2, "imgbar": 3, "arr1": 4, "wait1": 5, "P3B0": 6, "end": 7},
    4: {"start": 0, "wait1": 1, "P3B0": 2, "P3main": 3, "P3x": 4, "P3st": 5, "loopend": 6, "end": 7},
}
def nstamp(a, name, prof):
    if not prof: return
    idx = PROFSETS[prof].get(name)
    if idx is None: return
    stamp(a, idx, prof)

def stamp(a, idx, prof):
    if not prof: return
    a.emit(f"s_memtime s[{64+4*idx}:{65+4*idx}]")
    a.emit(f"s_memrealtime s[{66+4*idx}:{67+4*idx}]")

def stamp_store(a, prof, s_ws, s_w, vt0, vt1, nst=8, ws_prof=0, nwaves_log=3):
    if not prof: return
    a.emit("s_waitcnt lgkmcnt(0)")
    a.emit(f"s_lshl_b32 s60, s2, {nwaves_log}")
    a.emit(f"s_add_u32 s60, s60, s{s_w}")
    a.emit("s_lshl_b32 s60, s60, 7")
    a.emit(f"s_add_u32 s60, s60, {ws_prof}")
    a.emit(f"s_add_u32 s62, s{s_ws}, s60")
    a.emit(f"s_addc_u32 s63, s{s_ws+1}, 0")
    a.emit(f"s_mov_b64 exec, -1")
    a.emit(f"v_mov_b32 v{vt0}, 0")
    for i in range(nst * 4):
        a.emit(f"v_mov_b32 v{vt1}, s{64+i}")
        a.emit(f"global_store_dword v{vt0}, v{vt1}, s[62:63] offset:{4*i}")
```

```python
from asm import *
from layout import *
import struct
def f2u(x): return struct.unpack("<I", struct.pack("<f", x))[0]
S_WS = 4
S_WG = 96
S_DBG = 98
V_LANE_G = 228; V_L16_G = 229
NV = 232
_uid = [0]
def uid():
    _uid[0] += 1; return _uid[0]

def mfma(a, d, A, B, C):
    c = "0" if C is None else vr(C, 16)
    a.emit(f"v_mfma_f32_32x32x16_bf16 {vr(d,16)}, {vr(A,4)}, {vr(B,4)}, {c}")
def mfma8(a, d, A, B, C):
    c = "0" if C is None else vr(C, 16)
    a.emit(f"v_mfma_f32_32x32x8_bf16 {vr(d,16)}, {vr(A,2)}, {vr(B,2)}, {c}")

def div20(a, dst_row, dst_seg, p):
    a.emit(f"v_mul_u32_u24 {vr(dst_row)}, 3277, {vr(p)}")
    a.emit(f"v_lshrrev_b32 {vr(dst_row)}, 16, {vr(dst_row)}")
    a.emit(f"v_mul_u32_u24 {vr(dst_seg)}, 20, {vr(dst_row)}")
    a.emit(f"v_sub_u32 {vr(dst_seg)}, {vr(p)}, {vr(dst_seg)}")

SPIN = 2000000
def init_counters(a, vt0, vt1):
    u = uid()
    a.emit(f"s_or_b32 s60, s2, {sr(S_WG)}")
    a.emit("s_cmp_eq_u32 s60, 0")
    a.emit(f"s_cbranch_scc0 G_noinit{u}")
    for i in range(4): a.emit(f"v_mov_b32 {vr(vt0+i)}, 0")
    a.emit(f"v_add_u32 {vr(vt1)}, {WS_CNT}, {vr(V_L16_G)}")
    for i in range(4): a.emit(f"global_store_dwordx4 {vr(vt1)}, {vr(vt0,4)}, {sr(S_WS,2)} offset:{i*1024} sc1")
    a.emit(f"v_add_u32 {vr(vt1)}, 4096, {vr(vt1)}")
    for i in range(4): a.emit(f"global_store_dwordx4 {vr(vt1)}, {vr(vt0,4)}, {sr(S_WS,2)} offset:{i*1024} sc1")
    a.emit("s_waitcnt vmcnt(0)")
    a.emit(f"v_mov_b32 {vr(vt1)}, 1")
    a.emit("s_mov_b64 exec, 1")
    a.emit(f"global_store_dword {vr(vt0)}, {vr(vt1)}, {sr(S_DBG,2)} sc1")
    a.emit("s_mov_b64 exec, -1")
    a.label(f"G_noinit{u}")

def init_check(a, vt0, vt1):
    u = uid()
    a.emit(f"s_cmp_eq_u32 {sr(S_WG)}, 0")
    a.emit(f"s_cbranch_scc0 G_nochk{u}")
    a.emit(f"v_mov_b32 {vr(vt0)}, 0")
    a.emit(f"s_mov_b32 s60, {SPIN}")
    a.label(f"G_chk{u}")
    a.emit(f"global_load_dword {vr(vt1)}, {vr(vt0)}, {sr(S_DBG,2)} sc1")
    a.emit("s_waitcnt vmcnt(0)")
    a.emit(f"v_readfirstlane_b32 s61, {vr(vt1)}")
    a.emit("s_sub_u32 s60, s60, 1")
    a.emit("s_cmp_eq_u32 s60, 0")
    a.emit(f"s_cbranch_scc1 G_nochk{u}")
    a.emit("s_cmp_eq_u32 s61, 0")
    a.emit(f"s_cbranch_scc1 G_chk{u}")
    a.label(f"G_nochk{u}")

def gbar_arrive(a, k, vt0, vt1, prof=False):
    u = uid()
    a.emit("s_waitcnt vmcnt(0) lgkmcnt(0)")
    if k == 0: nstamp(a, "P1vm", prof)
    a.emit("s_barrier")
    a.emit(f"s_cmp_eq_u32 {sr(S_WG)}, 0")
    a.emit(f"s_cbranch_scc0 G_noarr{u}")
    a.emit("s_and_b32 s60, s2, 7")
    a.emit("s_lshl_b32 s60, s60, 7")
    a.emit(f"s_add_u32 s60, s60, {WS_CNT + k*1024}")
    a.emit(f"v_mov_b32 {vr(vt0)}, s60")
    a.emit(f"v_mov_b32 {vr(vt1)}, 1")
    a.emit("s_mov_b64 exec, 1")
    a.emit(f"global_atomic_add {vr(vt0)}, {vr(vt1)}, {sr(S_WS,2)} sc1")
    a.emit("s_mov_b64 exec, -1")
    a.label(f"G_noarr{u}")

def gbar_wait(a, k, vt0, vt1, sleep=1):
    u = uid()
    a.emit(f"s_cmp_eq_u32 {sr(S_WG)}, 0")
    a.emit(f"s_cbranch_scc0 G_nowait{u}")
    a.emit(f"v_and_b32 {vr(vt0)}, 7, {vr(V_LANE_G)}")
    a.emit(f"v_lshlrev_b32 {vr(vt0)}, 7, {vr(vt0)}")
    a.emit(f"v_add_u32 {vr(vt0)}, {WS_CNT + k*1024}, {vr(vt0)}")
    a.emit(f"s_mov_b32 s60, {SPIN}")
    a.label(f"G_poll{u}")
    a.emit(f"global_load_dword {vr(vt1)}, {vr(vt0)}, {sr(S_WS,2)} sc1")
    a.emit("s_waitcnt vmcnt(0)")
    a.emit(f"v_cmp_le_u32 vcc, 32, {vr(vt1)}")
    a.emit("s_sub_u32 s60, s60, 1")
    a.emit("s_cmp_eq_u32 s60, 0")
    a.emit(f"s_cbranch_scc1 G_nowait{u}")
    a.emit("s_cmp_eq_u64 vcc, -1")
    a.emit(f"s_cbranch_scc1 G_nowait{u}")
    if sleep: a.emit(f"s_sleep {sleep}")
    a.emit(f"s_branch G_poll{u}")
    a.label(f"G_nowait{u}")
    a.emit("s_barrier")

def code_prefetch(a, name, vt0, vt1, n=5):
    u = uid()
    a.emit(f"s_cmp_eq_u32 {sr(S_WG)}, 4")
    a.emit(f"s_cbranch_scc0 G_nocp{u}")
    a.emit("s_getpc_b64 s[60:61]")
    a.label(f"G_cp{u}")
    a.emit(f"v_lshlrev_b32 {vr(vt0)}, 7, {vr(V_LANE_G)}")
    for i in range(n):
        a.emit(f"v_min_u32 {vr(vt1+1)}, {name}_end-G_cp{u}, {vr(vt0)}")
        a.emit(f"global_load_dword {vr(vt1)}, {vr(vt1+1)}, s[60:61]")
        if i < n - 1: a.emit(f"v_add_u32 {vr(vt0)}, 8192, {vr(vt0)}")
    a.label(f"G_nocp{u}")
```

```python
from asm import *
from layout import *
from common import *

ACC = 0; XT = 80; AF = 96; BFR = 144; WA = 152; XA = 158; E_ = 162
M_ = 200
V_LANE = M_; V_L16 = M_ + 1
V_T0 = M_ + 2; V_T1 = M_ + 3; V_T2 = M_ + 4; V_T3 = M_ + 5
V_LO = M_ + 6
S_W = 10; S_T = 14; S_T2 = 15
S_ROLE = 11; S_RB = 12; S_G = 13
S_X = 16; S_WB = 18; S_EX = 20
S_CNT = 22; S_M0X = 23; S_M0W = 24; S_M0E = 25; S_DELTA = 26; S_BUF = 27
S_WADV = 28; S_NC = 29
S_MLO = 30; S_MHI = 32
S_O = 34
S_EXM = 36
S_K1 = 38; S_K2 = 39; S_K3 = 40; S_K4 = 41; S_ROT = 42; S_KC = 43
XS = 16384; WS_ = 20480
STAGE = XS + WS_
EXTRA = 4 * STAGE
LDS_P1 = EXTRA + 10240
LOG2E = 0x3fb8aa3b
ST = " sc1"
DBG = {}

def ids_mixed(a):
    a.emit(f"s_and_b32 {sr(S_T)}, s2, 7")
    a.emit(f"s_lshr_b32 {sr(S_T2)}, s2, 3")
    a.emit(f"s_mul_i32 {sr(S_ROT)}, {sr(S_T2)}, 3")
    a.emit(f"s_mul_i32 {sr(S_RB)}, {sr(S_ROT)}, 103")
    a.emit(f"s_lshr_b32 {sr(S_RB)}, {sr(S_RB)}, 10")
    a.emit(f"s_mul_i32 {sr(S_RB)}, {sr(S_RB)}, 10")
    a.emit(f"s_sub_u32 {sr(S_ROT)}, {sr(S_ROT)}, {sr(S_RB)}")
    a.emit(f"s_cmp_ge_u32 {sr(S_T2)}, 8")
    a.emit("s_cbranch_scc1 P1_idsB")
    a.emit(f"s_lshl_b32 {sr(S_RB)}, {sr(S_T)}, 1")
    a.emit(f"s_lshr_b32 {sr(S_T)}, {sr(S_T2)}, 2")
    a.emit(f"s_add_u32 {sr(S_RB)}, {sr(S_RB)}, {sr(S_T)}")
    a.emit(f"s_and_b32 {sr(S_G)}, {sr(S_T2)}, 3")
    a.emit(f"s_add_u32 {sr(S_ROLE)}, {sr(S_G)}, 1")
    a.emit(f"s_cmp_ge_u32 {sr(S_G)}, 2")
    a.emit(f"s_cselect_b32 {sr(S_ROLE)}, 0, {sr(S_ROLE)}")
    a.emit("s_branch P1_idsE")
    a.label("P1_idsB")
    a.emit(f"s_sub_u32 {sr(S_T2)}, {sr(S_T2)}, 8")
    a.emit(f"s_mul_i32 {sr(S_RB)}, {sr(S_T2)}, 43")
    a.emit(f"s_lshr_b32 {sr(S_RB)}, {sr(S_RB)}, 8")
    a.emit(f"s_mul_i32 {sr(S_G)}, {sr(S_RB)}, 6")
    a.emit(f"s_sub_u32 {sr(S_G)}, {sr(S_T2)}, {sr(S_G)}")
    a.emit(f"s_lshr_b32 {sr(S_T2)}, {sr(S_T)}, 1")
    a.emit(f"s_lshl_b32 {sr(S_T2)}, {sr(S_T2)}, 2")
    a.emit(f"s_add_u32 {sr(S_RB)}, {sr(S_RB)}, {sr(S_T2)}")
    a.emit(f"s_and_b32 {sr(S_T)}, {sr(S_T)}, 1")
    a.emit(f"s_cmp_lt_u32 {sr(S_G)}, 2")
    a.emit("s_cbranch_scc0 P1_idsKV")
    a.emit(f"s_mov_b32 {sr(S_ROLE)}, 3")
    a.emit(f"s_lshl_b32 {sr(S_T)}, {sr(S_T)}, 1")
    a.emit(f"s_add_u32 {sr(S_G)}, {sr(S_G)}, {sr(S_T)}")
    a.emit("s_branch P1_idsE")
    a.label("P1_idsKV")
    a.emit(f"s_mov_b32 {sr(S_ROLE)}, 4")
    a.emit(f"s_lshl_b32 {sr(S_T)}, {sr(S_T)}, 2")
    a.emit(f"s_add_u32 {sr(S_G)}, {sr(S_G)}, {sr(S_T)}")
    a.emit(f"s_sub_u32 {sr(S_G)}, {sr(S_G)}, 2")
    a.label("P1_idsE")

def ids(a):
    a.emit(f"s_and_b32 {sr(S_T)}, s2, 7")
    a.emit(f"s_lshr_b32 {sr(S_T2)}, s2, 3")
    a.emit(f"s_lshr_b32 {sr(S_RB)}, {sr(S_T2)}, 2")
    a.emit(f"s_and_b32 {sr(S_G)}, {sr(S_T2)}, 3")
    a.emit(f"s_mul_i32 {sr(S_ROT)}, {sr(S_G)}, 3")
    a.emit(f"s_add_u32 {sr(S_ROT)}, {sr(S_ROT)}, {sr(S_RB)}")
    a.emit(f"s_cmp_ge_u32 {sr(S_ROT)}, 10")
    a.emit(f"s_cselect_b32 {sr(S_T2)}, 10, 0")
    a.emit(f"s_sub_u32 {sr(S_ROT)}, {sr(S_ROT)}, {sr(S_T2)}")
    a.emit(f"s_cmp_ge_u32 {sr(S_T)}, 2")
    a.emit("s_cbranch_scc1 P1_idsB")
    a.emit(f"s_lshl_b32 {sr(S_T)}, {sr(S_T)}, 3")
    a.emit(f"s_add_u32 {sr(S_RB)}, {sr(S_RB)}, {sr(S_T)}")
    a.emit(f"s_add_u32 {sr(S_ROLE)}, {sr(S_G)}, 1")
    a.emit(f"s_cmp_ge_u32 {sr(S_G)}, 2")
    a.emit(f"s_cselect_b32 {sr(S_ROLE)}, 0, {sr(S_ROLE)}")
    a.emit("s_branch P1_idsE")
    a.label("P1_idsB")
    a.emit(f"s_sub_u32 {sr(S_T)}, {sr(S_T)}, 2")
    a.emit(f"s_and_b32 {sr(S_T2)}, {sr(S_T)}, 1")
    a.emit(f"s_lshl_b32 {sr(S_T2)}, {sr(S_T2)}, 3")
    a.emit(f"s_add_u32 {sr(S_RB)}, {sr(S_RB)}, {sr(S_T2)}")
    a.emit(f"s_lshr_b32 {sr(S_T)}, {sr(S_T)}, 1")
    a.emit(f"s_cmp_eq_u32 {sr(S_T)}, 0")
    a.emit(f"s_cselect_b32 {sr(S_ROLE)}, 3, 4")
    a.emit("s_cbranch_scc1 P1_idsE")
    a.emit(f"s_sub_u32 {sr(S_T)}, {sr(S_T)}, 1")
    a.emit(f"s_lshl_b32 {sr(S_T)}, {sr(S_T)}, 2")
    a.emit(f"s_add_u32 {sr(S_G)}, {sr(S_G)}, {sr(S_T)}")
    a.label("P1_idsE")

def kstep(a, s, extra):
    cur = s & 1; nxt = cur ^ 1
    ns = (s + 1) & 3
    nt = 6 if extra else 5
    for t in range(nt):
        if t < 5:
            mfma(a, ACC + 16 * t, AF + 24 * cur + 4 * t, BFR + 4 * cur, ACC + 16 * t)
        elif extra == 'K':
            mfma(a, XT, AF + 24 * cur + 20, BFR + 4 * cur, XT)
        else:
            mfma(a, XT, BFR + 4 * cur, AF + 24 * cur + 20, XT)
        if t < nt - 1:
            n_after = 2 * (nt - 2 - t) + (0 if t == 0 else 2 * t + 1)
        else:
            n_after = 2 * (nt - 2)
        a.emit(f"s_waitcnt lgkmcnt({n_after})")
        if t == 0:
            if s == 3:
                a.emit("s_barrier")
                for r in list(range(XA, XA + 4)) + list(range(WA, WA + 5)):
                    a.emit(f"v_add_u32 {vr(r)}, {sr(S_DELTA)}, {vr(r)}")
                if extra:
                    a.emit(f"v_add_u32 {vr(WA+5)}, {sr(S_NC)}, {vr(WA+5)}")
            a.emit(f"ds_read_b128 {vr(BFR+4*nxt,4)}, {vr(XA+ns)}")
        if t < 5:
            off = ns * 16 * 320
            a.emit(f"ds_read_b64_tr_b16 {vr(AF+24*nxt+4*t,2)}, {vr(WA+t)} offset:{off}")
            a.emit(f"ds_read_b64_tr_b16 {vr(AF+24*nxt+4*t+2,2)}, {vr(WA+t)} offset:{off+1280}")
        else:
            off = ns * 16 * 40
            a.emit(f"ds_read_b64_tr_b16 {vr(AF+24*nxt+20,2)}, {vr(WA+5)} offset:{off}")
            a.emit(f"ds_read_b64_tr_b16 {vr(AF+24*nxt+22,2)}, {vr(WA+5)} offset:{off+160}")

def mainloop(a, tag, extra, prof):
    nt = 6 if extra else 5
    a.emit("s_barrier")
    nstamp(a, "P1B0", prof)
    if prof: a.emit("s_waitcnt lgkmcnt(0)")
    a.emit(f"ds_read_b128 {vr(BFR,4)}, {vr(XA)}")
    for t in range(nt):
        if t < 5:
            a.emit(f"ds_read_b64_tr_b16 {vr(AF+4*t,2)}, {vr(WA+t)}")
            a.emit(f"ds_read_b64_tr_b16 {vr(AF+4*t+2,2)}, {vr(WA+t)} offset:1280")
        else:
            a.emit(f"ds_read_b64_tr_b16 {vr(AF+20,2)}, {vr(WA+5)}")
            a.emit(f"ds_read_b64_tr_b16 {vr(AF+22,2)}, {vr(WA+5)} offset:160")
    a.emit(f"s_mov_b32 {sr(S_CNT)}, 10")
    a.emit(f"s_mov_b32 {sr(S_BUF)}, 0")
    a.emit(f"s_mov_b32 {sr(S_K3)}, {STAGE}")
    a.emit(f"s_mov_b32 {sr(S_K4)}, 2560")
    a.emit(f"s_waitcnt lgkmcnt({2*(nt-1)})")
    a.label(f"P1_loop_{tag}")
    a.emit(f"s_cmp_eq_u32 {sr(S_BUF)}, 3")
    a.emit(f"s_cselect_b32 {sr(S_DELTA)}, {(-3*STAGE) & 0xffffffff}, {sr(S_K3)}")
    a.emit(f"s_cselect_b32 {sr(S_NC)}, {(-3*2560) & 0xffffffff}, {sr(S_K4)}")
    a.emit(f"s_add_u32 {sr(S_BUF)}, {sr(S_BUF)}, 1")
    a.emit(f"s_and_b32 {sr(S_BUF)}, {sr(S_BUF)}, 3")
    for s in range(4): kstep(a, s, extra)
    a.emit(f"s_sub_u32 {sr(S_CNT)}, {sr(S_CNT)}, 1")
    a.emit(f"s_cmp_lg_u32 {sr(S_CNT)}, 0")
    a.emit(f"s_cbranch_scc1 P1_loop_{tag}")
    a.emit("s_waitcnt lgkmcnt(0)")
    nstamp(a, "P1main", prof)
    a.emit("s_nop 7")
    a.emit("s_nop 3")

def out_base(a, ws_off, mul_rb, mul_w, mul_g):
    a.emit(f"s_mul_i32 {sr(S_T)}, {sr(S_RB)}, {mul_rb}")
    a.emit(f"s_mul_i32 {sr(S_T2)}, {sr(S_W)}, {mul_w}")
    a.emit(f"s_add_u32 {sr(S_T)}, {sr(S_T)}, {sr(S_T2)}")
    a.emit(f"s_mul_i32 {sr(S_T2)}, {sr(S_G)}, {mul_g}")
    a.emit(f"s_add_u32 {sr(S_T)}, {sr(S_T)}, {sr(S_T2)}")
    a.emit(f"s_add_u32 {sr(S_T)}, {sr(S_T)}, {ws_off}")
    a.emit(f"s_add_u32 {sr(S_O)}, {sr(S_WS)}, {sr(S_T)}")
    a.emit(f"s_addc_u32 {sr(S_O+1)}, {sr(S_WS+1)}, 0")

def epi_AQ(a):
    out_base(a, WS_QF, 4 * 16 * 3072, 16 * 3072, 4 * 3072)
    def pair(p):
        L = []
        R = ACC + 20 * p
        e = E_ + 4 * (p & 1); o = e + 1; sh = e + 2; t = e + 3
        P = AF + 12 * p
        L.append(f"v_mul_f32 {vr(e)}, {vr(R)}, {vr(R)}")
        L.append(f"v_mul_f32 {vr(o)}, {vr(R+12)}, {vr(R+12)}")
        L.append(f"v_mul_f32 {vr(sh)}, {vr(R+8)}, {vr(R+8)}")
        for i in range(1, 8):
            L.append(f"v_fmac_f32 {vr(e)}, {vr(R+i)}, {vr(R+i)}")
            L.append(f"v_fmac_f32 {vr(o)}, {vr(R+12+i)}, {vr(R+12+i)}")
            if i < 4: L.append(f"v_fmac_f32 {vr(sh)}, {vr(R+8+i)}, {vr(R+8+i)}")
        L.append(f"v_cndmask_b32 {vr(t)}, 0, {vr(sh)}, {sr(S_MLO,2)}")
        L.append(f"v_add_f32 {vr(e)}, {vr(e)}, {vr(t)}")
        L.append(f"v_cndmask_b32 {vr(t)}, 0, {vr(sh)}, {sr(S_MHI,2)}")
        L.append(f"v_add_f32 {vr(o)}, {vr(o)}, {vr(t)}")
        for i in range(4): L.append(f"v_cvt_pk_bf16_f32 {vr(P+i)}, {vr(R+2*i)}, {vr(R+2*i+1)}")
        L.append(f"v_permlane32_swap_b32 {vr(o)}, {vr(e)}")
        for i in range(4): L.append(f"v_cvt_pk_bf16_f32 {vr(P+4+i)}, {vr(R+12+2*i)}, {vr(R+12+2*i+1)}")
        L.append(f"v_add_f32 {vr(o)}, {vr(o)}, {vr(e)}")
        L.append(f"v_cvt_pk_bf16_f32 {vr(P+8)}, {vr(R+8)}, {vr(R+9)}")
        L.append(f"v_sqrt_f32 {vr(P+10)}, {vr(o)}")
        L.append(f"v_cvt_pk_bf16_f32 {vr(P+9)}, {vr(R+10)}, {vr(R+11)}")
        L.append(f"v_mov_b32 {vr(P+11)}, 0")
        return L
    for p0 in (0, 2):
        for ins in interleave(pair(p0), pair(p0 + 1)): a.emit(ins)
        for p in (p0, p0 + 1):
            P = AF + 12 * p
            for f in range(3):
                a.emit(f"global_store_dwordx4 {vr(V_L16)}, {vr(P+4*f,4)}, {sr(S_O,2)} offset:{f*1024}{ST}")
            if p < 3:
                a.emit(f"s_add_u32 {sr(S_O)}, {sr(S_O)}, 3072")
                a.emit(f"s_addc_u32 {sr(S_O+1)}, {sr(S_O+1)}, 0")

def epi_K(a):
    R = XT
    a.emit(f"s_mov_b32 {sr(S_K1)}, {f2u(CSCALE)}")
    for i in range(12): a.emit(f"v_mul_f32 {vr(R+i)}, {sr(S_K1)}, {vr(R+i)}")
    x = E_; y = E_ + 1; t = E_ + 2; t2 = E_ + 3
    a.emit(f"v_mul_f32 {vr(x)}, {vr(R)}, {vr(R)}")
    a.emit(f"v_mul_f32 {vr(y)}, {vr(R+8)}, {vr(R+8)}")
    for i in range(1, 8): a.emit(f"v_fmac_f32 {vr(x)}, {vr(R+i)}, {vr(R+i)}")
    for i in range(1, 4): a.emit(f"v_fmac_f32 {vr(y)}, {vr(R+8+i)}, {vr(R+8+i)}")
    a.emit(f"v_cndmask_b32 {vr(y)}, 0, {vr(y)}, {sr(S_MLO,2)}")
    a.emit(f"v_add_f32 {vr(x)}, {vr(x)}, {vr(y)}")
    P = E_ + 8
    for i in range(4): a.emit(f"v_cvt_pk_bf16_f32 {vr(P+i)}, {vr(R+2*i)}, {vr(R+2*i+1)}")
    a.emit(f"v_mov_b32 {vr(t)}, {vr(x)}")
    a.emit(f"v_cvt_pk_bf16_f32 {vr(R+12)}, {vr(R+8)}, {vr(R+9)}")
    a.emit(f"v_cvt_pk_bf16_f32 {vr(R+13)}, {vr(R+10)}, {vr(R+11)}")
    a.emit(f"v_permlane32_swap_b32 {vr(t)}, {vr(x)}")
    a.emit(f"v_mov_b32 {vr(R+14)}, 0x3f803f80")
    a.emit(f"v_mov_b32 {vr(R+15)}, 0x3f80")
    a.emit(f"v_add_f32 {vr(x)}, {vr(x)}, {vr(t)}")
    a.emit(f"v_cndmask_b32 {vr(P+4)}, {vr(R+14)}, {vr(R+12)}, {sr(S_MLO,2)}")
    a.emit(f"v_cndmask_b32 {vr(P+5)}, {vr(R+15)}, {vr(R+13)}, {sr(S_MLO,2)}")
    a.emit(f"v_cndmask_b32 {vr(P+6)}, {vr(R+14)}, {vr(R+12)}, {sr(S_MHI,2)}")
    a.emit(f"v_cndmask_b32 {vr(P+7)}, {vr(R+15)}, {vr(R+13)}, {sr(S_MHI,2)}")
    out_base(a, WS_KV, 4 * 4096, 4096, 0)
    if not DBG.get("nokv"):
        a.emit(f"global_store_dwordx4 {vr(V_L16)}, {vr(P,4)}, {sr(S_O,2)}{ST}")
        a.emit(f"global_store_dwordx4 {vr(V_L16)}, {vr(P+4,4)}, {sr(S_O,2)} offset:1024{ST}")
    for r in (8, 4, 2, 1):
        a.emit(f"v_max_f32_dpp {vr(x)}, {vr(x)}, {vr(x)} row_ror:{r} row_mask:0xf bank_mask:0xf")
    a.emit(f"v_readlane_b32 {sr(S_K1)}, {vr(x)}, 0")
    a.emit(f"v_readlane_b32 {sr(S_K2)}, {vr(x)}, 16")
    out_base(a, WS_KMAX, 16, 4, 0)
    a.emit(f"s_max_u32 {sr(S_K1)}, {sr(S_K1)}, {sr(S_K2)}")
    a.emit(f"v_mov_b32 {vr(t)}, {sr(S_K1)}")
    a.emit(f"v_mov_b32 {vr(t2)}, 0")
    a.emit("s_mov_b64 exec, 1")
    if not DBG.get("nokmax"): a.emit(f"global_store_dword {vr(t2)}, {vr(t)}, {sr(S_O,2)}{ST}")
    a.emit("s_mov_b64 exec, -1")

def epi_V(a):
    R = XT; P = E_ + 8
    n = E_; fill = E_ + 1
    a.emit(f"v_and_b32 {vr(n)}, 31, {vr(V_LANE)}")
    a.emit(f"v_cmp_eq_u32 vcc, 20, {vr(n)}")
    a.emit(f"v_mov_b32 {vr(E_+2)}, 0x3f803f80")
    for i in range(8): a.emit(f"v_cvt_pk_bf16_f32 {vr(P+i)}, {vr(R+2*i)}, {vr(R+2*i+1)}")
    a.emit(f"v_cndmask_b32 {vr(fill)}, 0, {vr(E_+2)}, vcc")
    a.emit(f"v_cmp_gt_u32 vcc, 20, {vr(n)}")
    for i in range(8): a.emit(f"v_cndmask_b32 {vr(P+i)}, {vr(fill)}, {vr(P+i)}, vcc")
    out_base(a, WS_KV + 2048, 4 * 4096, 4096, 0)
    if not DBG.get("nokv"):
        a.emit(f"global_store_dwordx4 {vr(V_L16)}, {vr(P,4)}, {sr(S_O,2)}{ST}")
        a.emit(f"global_store_dwordx4 {vr(V_L16)}, {vr(P+4,4)}, {sr(S_O,2)} offset:1024{ST}")

QP = 96
PB = [0, 16, 32, 48]
EPN = [64, 136]
PH8 = [84, 156]
PHT = 92
WF = [164, 170, 176, 182]
WPA = 188
FT = [190, 206]

def pack_pairs(a, pairs):
    Ls = []
    for n, p in enumerate(pairs):
        R = ACC + 20 * p; P = QP + 10 * n
        for i in range(4): a.emit(f"v_cvt_pk_bf16_f32 {vr(P+i)}, {vr(R+2*i)}, {vr(R+2*i+1)}")
        for i in range(4): a.emit(f"v_cvt_pk_bf16_f32 {vr(P+4+i)}, {vr(R+12+2*i)}, {vr(R+12+2*i+1)}")
        for i in range(2): a.emit(f"v_cvt_pk_bf16_f32 {vr(P+8+i)}, {vr(R+8+2*i)}, {vr(R+8+2*i+1)}")

def wphi_addr(a):
    l = V_LANE; t = FT[0]
    a.emit(f"v_bfe_u32 {vr(t)}, {vr(l)}, 4, 1")
    a.emit(f"v_lshlrev_b32 {vr(t)}, 2, {vr(t)}")
    a.emit(f"v_and_b32 {vr(t+1)}, 3, {vr(l)}")
    a.emit(f"v_add_u32 {vr(t)}, {vr(t)}, {vr(t+1)}")
    a.emit(f"v_min_u32 {vr(t)}, 4, {vr(t)}")
    a.emit(f"v_lshlrev_b32 {vr(t)}, 3, {vr(t)}")
    a.emit(f"v_bfe_u32 {vr(t+1)}, {vr(l)}, 2, 2")
    a.emit(f"v_mul_u32_u24 {vr(t+1)}, 40, {vr(t+1)}")
    a.emit(f"v_add_u32 {vr(t)}, {vr(t)}, {vr(t+1)}")
    a.emit(f"v_add_u32 {vr(WPA+1)}, {EXTRA + 16*40}, {vr(t)}")
    a.emit(f"v_lshrrev_b32 {vr(t+1)}, 5, {vr(l)}")
    a.emit(f"v_mul_u32_u24 {vr(t+1)}, 160, {vr(t+1)}")
    a.emit(f"v_add_u32 {vr(t)}, {vr(t)}, {vr(t+1)}")
    a.emit(f"v_add_u32 {vr(WPA)}, {EXTRA}, {vr(t)}")

def wphi_read(a, p):
    for e in range(2):
        hh = 2 * p + e; W = WF[2 * (p & 1) + e]
        a.emit(f"ds_read_b64_tr_b16 {vr(W,2)}, {vr(WPA)} offset:{hh*800}")
        a.emit(f"ds_read_b64_tr_b16 {vr(W+2,2)}, {vr(WPA)} offset:{hh*800+8*40}")
        a.emit(f"ds_read_b64_tr_b16 {vr(W+4,2)}, {vr(WPA+1)} offset:{hh*800}")

def phi_mfma(a, p):
    Q = QP + 10 * p
    a.emit("s_waitcnt lgkmcnt(0)")
    for e in range(2):
        W = WF[2 * (p & 1) + e]; m = S_MLO if e == 0 else S_MHI
        a.emit(f"v_cndmask_b32 {vr(W+4)}, 0, {vr(W+4)}, {sr(m,2)}")
        a.emit(f"v_cndmask_b32 {vr(W+5)}, 0, {vr(W+5)}, {sr(m,2)}")
    for e in range(2):
        W = WF[2 * (p & 1) + e]; P = PB[2 * (p & 1) + e]
        mfma(a, P, W, Q + 4 * e, None)
    for e in range(2):
        W = WF[2 * (p & 1) + e]; P = PB[2 * (p & 1) + e]
        mfma8(a, P, W + 4, Q + 8, P)

def featmap(p, e):
    L = []
    P = PB[2 * (p & 1) + e]; EP = EPN[e]; EN = EP + 10
    M = FT[e]; N = M + 1; T = M + 2; T2 = M + 3; SP = M + 4; SN = M + 6
    out = [PH8[e] + i for i in range(8)] + [PHT + 2 * e, PHT + 2 * e + 1]
    L.append(f"v_cndmask_b32 {vr(P+8)}, {vr(P+8)}, {vr(P+10)}, {sr(S_MHI,2)}")
    L.append(f"v_cndmask_b32 {vr(P+9)}, {vr(P+9)}, {vr(P+11)}, {sr(S_MHI,2)}")
    L.append(f"v_max3_f32 {vr(M)}, {vr(P)}, {vr(P+1)}, {vr(P+2)}")
    L.append(f"v_max3_f32 {vr(N)}, -{vr(P)}, -{vr(P+1)}, -{vr(P+2)}")
    for i in (3, 5, 7):
        L.append(f"v_max3_f32 {vr(M)}, {vr(M)}, {vr(P+i)}, {vr(P+i+1)}")
        L.append(f"v_max3_f32 {vr(N)}, {vr(N)}, -{vr(P+i)}, -{vr(P+i+1)}")
    L.append(f"v_max_f32 {vr(M)}, {vr(M)}, {vr(P+9)}")
    L.append(f"v_max_f32 {vr(N)}, {vr(N)}, -{vr(P+9)}")
    L.append(f"v_permlane32_swap_b32 {vr(M)}, {vr(N)}")
    L.append(f"v_max_f32 {vr(M)}, {vr(M)}, {vr(N)}")
    L.append(f"v_mul_f32 {vr(M)}, {sr(S_K2)}, {vr(M)}")
    L.append(f"v_mov_b32 {vr(N)}, {vr(M)}")
    L.append(f"v_permlane32_swap_b32 {vr(M)}, {vr(N)}")
    for i in range(10):
        L.append(f"v_fma_f32 {vr(EP+i)}, {vr(P+i)}, {sr(S_K1)}, {vr(M)}")
        L.append(f"v_fma_f32 {vr(EN+i)}, {vr(P+i)}, {sr(S_K2)}, {vr(N)}")
    for i in range(10):
        L.append(f"v_exp_f32 {vr(EP+i)}, {vr(EP+i)}")
        L.append(f"v_exp_f32 {vr(EN+i)}, {vr(EN+i)}")
    L.append(f"v_pk_add_f32 {vr(SP,2)}, {vr(EP,2)}, {vr(EP+2,2)}")
    L.append(f"v_pk_add_f32 {vr(SN,2)}, {vr(EN,2)}, {vr(EN+2,2)}")
    for i in (4, 6, 8):
        L.append(f"v_pk_add_f32 {vr(SP,2)}, {vr(SP,2)}, {vr(EP+i,2)}")
        L.append(f"v_pk_add_f32 {vr(SN,2)}, {vr(SN,2)}, {vr(EN+i,2)}")
    L.append(f"v_add_f32 {vr(M)}, {vr(SP)}, {vr(SP+1)}")
    L.append(f"v_add_f32 {vr(N)}, {vr(SN)}, {vr(SN+1)}")
    L.append(f"v_permlane32_swap_b32 {vr(M)}, {vr(N)}")
    L.append(f"v_add_f32 {vr(M)}, {vr(M)}, {vr(N)}")
    L.append(f"v_rcp_f32 {vr(T)}, {vr(M)}")
    L.append(f"v_mov_b32 {vr(T2)}, {vr(T)}")
    L.append(f"v_permlane32_swap_b32 {vr(T)}, {vr(T2)}")
    for i in range(5):
        L.append(f"v_pk_mul_f32 {vr(EP+2*i,2)}, {vr(EP+2*i,2)}, {vr(T,2)} op_sel_hi:[1,0]")
        L.append(f"v_pk_mul_f32 {vr(EN+2*i,2)}, {vr(EN+2*i,2)}, {vr(T,2)} op_sel:[0,1] op_sel_hi:[1,1]")
    for i in range(5):
        L.append(f"v_cvt_pk_bf16_f32 {vr(out[i])}, {vr(EP+2*i)}, {vr(EP+2*i+1)}")
        L.append(f"v_cvt_pk_bf16_f32 {vr(out[5+i])}, {vr(EN+2*i)}, {vr(EN+2*i+1)}")
    return L

def consts_phi(a):
    a.emit(f"s_mov_b32 {sr(S_K1)}, {LOG2E}")
    a.emit(f"s_mov_b32 {sr(S_K2)}, {LOG2E | 0x80000000}")

def epi_Bq(a):
    wphi_addr(a)
    wphi_read(a, 0)
    pack_pairs(a, [0, 1, 2, 3])
    consts_phi(a)
    out_base(a, WS_PHIQ, 4 * 16 * 5120, 16 * 5120, 4 * 5120)
    a.emit(f"v_add_u32 {vr(V_T0)}, 3072, {vr(V_L16)}")
    phi_mfma(a, 0)
    for p in range(4):
        if p < 3:
            wphi_read(a, p + 1)
            phi_mfma(a, p + 1)
        for ins in interleave(featmap(p, 0), featmap(p, 1)): a.emit(ins)
        a.emit(f"global_store_dwordx4 {vr(V_L16)}, {vr(PH8[0],4)}, {sr(S_O,2)}{ST}")
        a.emit(f"global_store_dwordx4 {vr(V_L16)}, {vr(PH8[0]+4,4)}, {sr(S_O,2)} offset:1024{ST}")
        a.emit(f"global_store_dwordx4 {vr(V_L16)}, {vr(PH8[1],4)}, {sr(S_O,2)} offset:2048{ST}")
        a.emit(f"global_store_dwordx4 {vr(V_L16)}, {vr(PH8[1]+4,4)}, {sr(S_O,2)} offset:3072{ST}")
        a.emit(f"global_store_dwordx4 {vr(V_T0)}, {vr(PHT,4)}, {sr(S_O,2)} offset:1024{ST}")
        if p < 3:
            a.emit(f"s_add_u32 {sr(S_O)}, {sr(S_O)}, 5120")
            a.emit(f"s_addc_u32 {sr(S_O+1)}, {sr(S_O+1)}, 0")

PHI_L = 0; V_L = 40960
def epi_Bkv(a):
    wphi_addr(a)
    wphi_read(a, 0)
    pack_pairs(a, [0, 1, 2, 3])
    consts_phi(a)
    a.emit("s_barrier")
    s_ = V_T0; pa = V_T1; va = V_T2
    t4 = 214; t5 = 215; o1 = 216
    a.emit(f"v_and_b32 {vr(s_)}, 31, {vr(V_LANE)}")
    a.emit(f"s_lshl_b32 {sr(S_T)}, {sr(S_W)}, 5")
    a.emit(f"v_add_u32 {vr(s_)}, {sr(S_T)}, {vr(s_)}")
    a.emit(f"v_lshrrev_b32 {vr(V_T3)}, 5, {vr(V_LANE)}")
    a.emit(f"v_mul_u32_u24 {vr(pa)}, 80, {vr(s_)}")
    a.emit(f"v_lshl_add_u32 {vr(pa)}, {vr(V_T3)}, 3, {vr(pa)}")
    a.emit(f"v_mul_u32_u24 {vr(va)}, 48, {vr(s_)}")
    a.emit(f"v_add_u32 {vr(va)}, {V_L}, {vr(va)}")
    a.emit(f"v_lshl_add_u32 {vr(t4)}, {vr(V_T3)}, 3, {vr(va)}")
    a.emit(f"v_mul_u32_u24 {vr(t5)}, 6144, {vr(V_T3)}")
    a.emit(f"v_add_u32 {vr(t5)}, {vr(t5)}, {vr(va)}")
    a.emit(f"v_mov_b32 {vr(o1)}, 0x3f80")
    a.emit(f"v_mov_b32 {vr(o1+1)}, 0")
    phi_mfma(a, 0)
    for pp in range(2):
        Q = QP + 10 * (2 + pp)
        for e in range(2):
            hd = 2 * pp + e
            a.emit(f"ds_write_b64 {vr(t4)}, {vr(Q+4*e,2)} offset:{hd*6144}")
            a.emit(f"ds_write_b64 {vr(t4)}, {vr(Q+4*e+2,2)} offset:{hd*6144+16}")
            a.emit(f"ds_write_b64 {vr(va)}, {vr(o1,2)} offset:{hd*6144+40}")
        a.emit(f"ds_write_b64 {vr(t5)}, {vr(Q+8,2)} offset:{2*pp*6144+32}")
    for p in range(2):
        if p < 1:
            wphi_read(a, p + 1)
            phi_mfma(a, p + 1)
        for ins in interleave(featmap(p, 0), featmap(p, 1)): a.emit(ins)
        for e in range(2):
            hh = 2 * p + e
            for gm in range(5):
                col = 32 * (gm >> 2) + 8 * (gm & 3)
                r = PH8[e] + 2 * gm if gm < 4 else PHT + 2 * e
                a.emit(f"ds_write_b64 {vr(pa)}, {vr(r,2)} offset:{PHI_L + hh*10240 + col*2}")
    a.emit("s_waitcnt lgkmcnt(0)")
    a.emit("s_barrier")
    l = V_LANE; t = FT[0]
    a.emit(f"v_lshrrev_b32 {vr(t)}, 5, {vr(l)}")
    a.emit(f"v_lshlrev_b32 {vr(t)}, 3, {vr(t)}")
    a.emit(f"v_bfe_u32 {vr(t+1)}, {vr(l)}, 2, 2")
    a.emit(f"v_add_u32 {vr(t)}, {vr(t)}, {vr(t+1)}")
    a.emit(f"v_bfe_u32 {vr(t+1)}, {vr(l)}, 4, 1")
    a.emit(f"v_lshlrev_b32 {vr(t+1)}, 5, {vr(t+1)}")
    a.emit(f"v_and_b32 {vr(t+2)}, 3, {vr(l)}")
    a.emit(f"v_lshl_add_u32 {vr(t+1)}, {vr(t+2)}, 3, {vr(t+1)}")
    a.emit(f"v_mul_u32_u24 {vr(t+2)}, 80, {vr(t)}")
    a.emit(f"v_add_u32 {vr(t+2)}, {vr(t+2)}, {vr(t+1)}")
    a.emit(f"s_mul_i32 {sr(S_T)}, {sr(S_W)}, 10240")
    a.emit(f"v_add_u32 {vr(t+2)}, {sr(S_T)}, {vr(t+2)}")
    a.emit(f"v_mul_u32_u24 {vr(t+3)}, 48, {vr(t)}")
    a.emit(f"v_add_u32 {vr(t+3)}, {vr(t+3)}, {vr(t+1)}")
    a.emit(f"s_mul_i32 {sr(S_T)}, {sr(S_W)}, 6144")
    a.emit(f"s_add_u32 {sr(S_T)}, {sr(S_T)}, {V_L}")
    a.emit(f"v_add_u32 {vr(t+3)}, {sr(S_T)}, {vr(t+3)}")
    F = 64
    def rd(ks):
        b = F + 12 * (ks & 1)
        a.emit(f"ds_read_b64_tr_b16 {vr(b,2)}, {vr(t+2)} offset:{ks*16*80}")
        a.emit(f"ds_read_b64_tr_b16 {vr(b+2,2)}, {vr(t+2)} offset:{ks*16*80+4*80}")
        a.emit(f"ds_read_b64_tr_b16 {vr(b+4,2)}, {vr(t+2)} offset:{ks*16*80+64}")
        a.emit(f"ds_read_b64_tr_b16 {vr(b+6,2)}, {vr(t+2)} offset:{ks*16*80+4*80+64}")
        a.emit(f"ds_read_b64_tr_b16 {vr(b+8,2)}, {vr(t+3)} offset:{ks*16*48}")
        a.emit(f"ds_read_b64_tr_b16 {vr(b+10,2)}, {vr(t+3)} offset:{ks*16*48+4*48}")
    rd(0)
    for ks in range(8):
        if ks < 7:
            rd(ks + 1)
            a.emit("s_waitcnt lgkmcnt(6)")
        else:
            a.emit("s_waitcnt lgkmcnt(0)")
        b = F + 12 * (ks & 1)
        mfma(a, 0, b, b + 8, None if ks == 0 else 0)
        mfma(a, 16, b + 4, b + 8, None if ks == 0 else 16)
    out_base(a, WS_KVP, 32 * 5120, 5120, 4 * 5120)
    for i in range(5):
        if i == 4:
            a.emit(f"s_add_u32 {sr(S_O)}, {sr(S_O)}, 4096")
            a.emit(f"s_addc_u32 {sr(S_O+1)}, {sr(S_O+1)}, 0")
        a.emit(f"global_store_dwordx4 {vr(V_L16)}, {vr(4*i,4)}, {sr(S_O,2)} offset:{(i%4)*1024}{ST}")

def phase1(a, prof, mixed=0):
    name = "P1"
    a.emit("s_load_dwordx4 s[44:47], s[0:1], 0")
    a.emit("s_load_dwordx4 s[48:51], s[0:1], 16")
    a.emit("s_load_dwordx4 s[52:55], s[0:1], 40")
    a.emit("s_load_dwordx2 s[56:57], s[0:1], 56")
    a.emit(f"v_mov_b32 {vr(V_LANE)}, {vr(V_LANE_G)}")
    a.emit(f"v_mov_b32 {vr(V_L16)}, {vr(V_L16_G)}")
    a.emit(f"s_mov_b32 {sr(S_W)}, {sr(S_WG)}")
    (ids_mixed if mixed else ids)(a)
    a.emit(f"s_mov_b32 {sr(S_MLO)}, -1"); a.emit(f"s_mov_b32 {sr(S_MLO+1)}, 0")
    a.emit(f"s_mov_b32 {sr(S_MHI)}, 0"); a.emit(f"s_mov_b32 {sr(S_MHI+1)}, -1")
    a.emit(f"s_cmp_ge_u32 {sr(S_W)}, 4")
    a.emit(f"s_cbranch_scc1 {name}_loader")
    l = V_LANE
    a.emit(f"v_and_b32 {vr(V_T0)}, 31, {vr(l)}")
    a.emit(f"v_bfe_u32 {vr(V_T1)}, {vr(l)}, 1, 3")
    a.emit(f"v_lshrrev_b32 {vr(V_T2)}, 5, {vr(l)}")
    a.emit(f"v_lshlrev_b32 {vr(V_T0)}, 7, {vr(V_T0)}")
    a.emit(f"s_lshl_b32 {sr(S_T)}, {sr(S_W)}, 12")
    a.emit(f"v_add_u32 {vr(V_T0)}, {sr(S_T)}, {vr(V_T0)}")
    for s in range(4):
        a.emit(f"v_add_u32 {vr(V_T3)}, {2*s}, {vr(V_T2)}")
        a.emit(f"v_xor_b32 {vr(V_T3)}, {vr(V_T3)}, {vr(V_T1)}")
        a.emit(f"v_lshl_add_u32 {vr(XA+s)}, {vr(V_T3)}, 4, {vr(V_T0)}")
    a.emit(f"v_lshrrev_b32 {vr(V_T0)}, 5, {vr(l)}")
    a.emit(f"v_lshlrev_b32 {vr(V_T0)}, 3, {vr(V_T0)}")
    a.emit(f"v_bfe_u32 {vr(V_T1)}, {vr(l)}, 2, 2")
    a.emit(f"v_add_u32 {vr(V_T0)}, {vr(V_T0)}, {vr(V_T1)}")
    a.emit(f"v_mul_u32_u24 {vr(E_)}, 320, {vr(V_T0)}")
    a.emit(f"v_add_u32 {vr(E_)}, {XS}, {vr(E_)}")
    a.emit(f"v_mul_u32_u24 {vr(E_+1)}, 40, {vr(V_T0)}")
    a.emit(f"v_add_u32 {vr(E_+1)}, {EXTRA}, {vr(E_+1)}")
    a.emit(f"v_bfe_u32 {vr(V_T1)}, {vr(l)}, 4, 1")
    a.emit(f"v_lshlrev_b32 {vr(V_T1)}, 1, {vr(V_T1)}")
    a.emit(f"v_bfe_u32 {vr(V_T2)}, {vr(l)}, 1, 1")
    a.emit(f"v_add_u32 {vr(V_T1)}, {vr(V_T1)}, {vr(V_T2)}")
    a.emit(f"v_and_b32 {vr(V_T2)}, 1, {vr(l)}")
    a.emit(f"v_lshl_add_u32 {vr(V_T3)}, {vr(V_T1)}, 1, {vr(V_T2)}")
    a.emit(f"v_min_u32 {vr(V_T3)}, 4, {vr(V_T3)}")
    a.emit(f"v_lshl_add_u32 {vr(WA+5)}, {vr(V_T3)}, 3, {vr(E_+1)}")
    for t in range(5):
        rho = E_ + 2; p = E_ + 3; u = E_ + 4; G = E_ + 5; x = E_ + 6
        a.emit(f"v_add_u32 {vr(rho)}, {4*t}, {vr(V_T1)}")
        a.emit(f"v_mul_u32_u24 {vr(p)}, 13, {vr(rho)}")
        a.emit(f"v_lshrrev_b32 {vr(p)}, 6, {vr(p)}")
        a.emit(f"v_mul_u32_u24 {vr(u)}, 5, {vr(p)}")
        a.emit(f"v_sub_u32 {vr(u)}, {vr(rho)}, {vr(u)}")
        a.emit(f"v_lshl_add_u32 {vr(G)}, {vr(u)}, 1, {vr(V_T2)}")
        a.emit(f"v_cmp_lt_u32 vcc, 2, {vr(u)}")
        a.emit(f"v_lshlrev_b32 {vr(x)}, 2, {vr(V_T2)}")
        a.emit(f"v_subrev_u32 {vr(rho)}, 1, {vr(G)}")
        a.emit(f"v_cndmask_b32 {vr(G)}, {vr(G)}, {vr(rho)}, vcc")
        a.emit(f"v_cmp_eq_u32 vcc, 2, {vr(u)}")
        a.emit(f"v_add_u32 {vr(x)}, {vr(x)}, {vr(G)}")
        a.emit(f"v_mul_u32_u24 {vr(p)}, 10, {vr(p)}")
        a.emit(f"v_cndmask_b32 {vr(G)}, {vr(G)}, {vr(x)}, vcc")
        a.emit(f"v_add_u32 {vr(G)}, {vr(G)}, {vr(p)}")
        a.emit(f"v_lshl_add_u32 {vr(WA+t)}, {vr(G)}, 3, {vr(E_)}")
    for i in range(4): a.emit(f"v_mov_b32 {vr(BFR+i)}, 0")
    for t in range(6): mfma(a, ACC + 16 * t, BFR, BFR, None)
    a.emit("s_waitcnt lgkmcnt(0)")
    init_check(a, V_T0, V_T1)
    a.emit(f"s_cmp_eq_u32 {sr(S_ROLE)}, 1")
    a.emit(f"s_cbranch_scc1 {name}_mainK")
    a.emit(f"s_cmp_eq_u32 {sr(S_ROLE)}, 2")
    a.emit(f"s_cbranch_scc1 {name}_mainV")
    mainloop(a, "P", None, prof)
    a.emit(f"s_cmp_eq_u32 {sr(S_ROLE)}, 3")
    a.emit(f"s_cbranch_scc1 {name}_epiBq")
    a.emit(f"s_cmp_eq_u32 {sr(S_ROLE)}, 4")
    a.emit(f"s_cbranch_scc1 {name}_epiBkv")
    a.label(f"{name}_epiAQ")
    epi_AQ(a)
    a.emit(f"s_branch {name}_fin")
    a.label(f"{name}_mainK")
    mainloop(a, "K", 'K', prof)
    epi_K(a)
    a.emit(f"s_branch {name}_epiAQ")
    a.label(f"{name}_mainV")
    mainloop(a, "V", 'V', prof)
    epi_V(a)
    a.emit(f"s_branch {name}_epiAQ")
    a.label(f"{name}_epiBq")
    epi_Bq(a)
    a.emit(f"s_branch {name}_fin")
    a.label(f"{name}_epiBkv")
    epi_Bkv(a)
    a.emit(f"s_branch {name}_fin")
    a.label(f"{name}_loader")
    a.emit(f"s_sub_u32 {sr(S_W)}, {sr(S_W)}, 4")
    for n in range(4):
        a.emit(f"v_lshrrev_b32 {vr(V_T0)}, 3, {vr(l)}")
        a.emit(f"v_add_u32 {vr(V_T0)}, {8*n}, {vr(V_T0)}")
        a.emit(f"v_bfe_u32 {vr(V_T1)}, {vr(V_T0)}, 1, 3")
        a.emit(f"v_and_b32 {vr(V_T2)}, 7, {vr(l)}")
        a.emit(f"v_xor_b32 {vr(V_T1)}, {vr(V_T1)}, {vr(V_T2)}")
        a.emit(f"v_mul_u32_u24 {vr(V_T0)}, 1280, {vr(V_T0)}")
        a.emit(f"v_lshl_add_u32 {vr(V_LO+n)}, {vr(V_T1)}, 4, {vr(V_T0)}")
    a.emit(f"s_cmp_lt_u32 {sr(S_ROLE)}, 3")
    a.emit(f"s_mov_b32 {sr(S_WADV)}, 3840")
    a.emit(f"s_cselect_b32 {sr(S_WADV)}, 1280, {sr(S_WADV)}")
    a.emit(f"s_cmp_eq_u32 {sr(S_ROLE)}, 4")
    a.emit(f"s_cselect_b32 {sr(S_T2)}, 1120, 0")
    a.emit(f"v_mov_b32 {vr(V_LO+9)}, {sr(S_T2)}")
    for n in range(5):
        a.emit(f"v_add_u32 {vr(V_T0)}, {64*n}, {vr(l)}")
        div20(a, V_T1, V_T2, V_T0)
        a.emit(f"v_cmp_le_u32 vcc, 10, {vr(V_T2)}")
        a.emit(f"v_mul_u32_u24 {vr(V_T1)}, {sr(S_WADV)}, {vr(V_T1)}")
        a.emit(f"v_lshl_add_u32 {vr(V_T1)}, {vr(V_T2)}, 4, {vr(V_T1)}")
        a.emit(f"v_cndmask_b32 {vr(V_T3)}, 0, {vr(V_LO+9)}, vcc")
        a.emit(f"v_add_u32 {vr(V_LO+4+n)}, {vr(V_T1)}, {vr(V_T3)}")
    a.emit("s_waitcnt lgkmcnt(0)")
    a.emit(f"s_cmp_lt_u32 {sr(S_ROLE)}, 3")
    a.emit(f"s_cselect_b32 {sr(S_X)}, s44, s52")
    a.emit(f"s_cselect_b32 {sr(S_X+1)}, s45, s53")
    a.emit(f"s_cselect_b32 {sr(S_WB)}, s46, s54")
    a.emit(f"s_cselect_b32 {sr(S_WB+1)}, s47, s55")
    a.emit(f"s_lshl_b32 {sr(S_T)}, {sr(S_RB)}, 2")
    a.emit(f"s_add_u32 {sr(S_T)}, {sr(S_T)}, {sr(S_W)}")
    a.emit(f"s_mul_i32 {sr(S_T)}, {sr(S_T)}, {32*1280}")
    a.emit(f"s_add_u32 {sr(S_X)}, {sr(S_X)}, {sr(S_T)}")
    a.emit(f"s_addc_u32 {sr(S_X+1)}, {sr(S_X+1)}, 0")
    a.emit(f"s_mul_i32 {sr(S_T)}, {sr(S_W)}, {sr(S_WADV)}")
    a.emit(f"s_lshl_b32 {sr(S_T)}, {sr(S_T)}, 4")
    a.emit(f"s_mul_i32 {sr(S_T2)}, {sr(S_G)}, 320")
    a.emit(f"s_mul_i32 {sr(S_K1)}, {sr(S_G)}, 160")
    a.emit(f"s_add_u32 {sr(S_K1)}, {sr(S_K1)}, 1280")
    a.emit(f"s_cmp_eq_u32 {sr(S_ROLE)}, 4")
    a.emit(f"s_cselect_b32 {sr(S_T2)}, {sr(S_K1)}, {sr(S_T2)}")
    a.emit(f"s_add_u32 {sr(S_T)}, {sr(S_T)}, {sr(S_T2)}")
    a.emit(f"s_add_u32 {sr(S_WB)}, {sr(S_WB)}, {sr(S_T)}")
    a.emit(f"s_addc_u32 {sr(S_WB+1)}, {sr(S_WB+1)}, 0")
    a.emit(f"s_lshl_b32 {sr(S_WADV)}, {sr(S_WADV)}, 6")
    a.emit(f"s_lshl_b32 {sr(S_M0X)}, {sr(S_W)}, 12")
    a.emit(f"s_mul_i32 {sr(S_M0W)}, {sr(S_W)}, 5120")
    a.emit(f"s_add_u32 {sr(S_M0W)}, {sr(S_M0W)}, {XS}")
    a.emit(f"s_min_u32 {sr(S_T)}, {sr(S_W)}, 2")
    a.emit(f"s_lshl_b32 {sr(S_M0E)}, {sr(S_T)}, 10")
    a.emit(f"v_add_u32 {vr(V_LO+9)}, {sr(S_M0E)}, {vr(V_L16)}")
    a.emit(f"s_add_u32 {sr(S_M0E)}, {sr(S_M0E)}, {EXTRA}")
    a.emit(f"s_cmp_lt_u32 {sr(S_W)}, 2")
    a.emit(f"s_cselect_b32 {sr(S_EXM+1)}, -1, 0")
    a.emit(f"s_mov_b32 {sr(S_EXM)}, -1")
    a.emit(f"s_cmp_eq_u32 {sr(S_ROLE)}, 1")
    a.emit(f"s_cselect_b32 {sr(S_EX)}, s48, s50")
    a.emit(f"s_cselect_b32 {sr(S_EX+1)}, s49, s51")
    a.emit(f"s_lshl_b32 {sr(S_T)}, {sr(S_ROT)}, 7")
    a.emit(f"s_add_u32 {sr(S_X)}, {sr(S_X)}, {sr(S_T)}")
    a.emit(f"s_addc_u32 {sr(S_X+1)}, {sr(S_X+1)}, 0")
    a.emit(f"s_mul_i32 {sr(S_T)}, {sr(S_ROT)}, {sr(S_WADV)}")
    a.emit(f"s_add_u32 {sr(S_WB)}, {sr(S_WB)}, {sr(S_T)}")
    a.emit(f"s_addc_u32 {sr(S_WB+1)}, {sr(S_WB+1)}, 0")
    a.emit(f"s_mul_i32 {sr(S_T)}, {sr(S_ROT)}, 2560")
    a.emit(f"s_add_u32 {sr(S_EX)}, {sr(S_EX)}, {sr(S_T)}")
    a.emit(f"s_addc_u32 {sr(S_EX+1)}, {sr(S_EX+1)}, 0")
    a.emit(f"s_mov_b32 {sr(S_KC)}, {sr(S_ROT)}")
    a.emit(f"s_mul_i32 {sr(S_K2)}, {sr(S_WADV)}, -9")
    def chunk(c, extra):
        buf = c % 4
        if c > 0:
            a.emit(f"s_add_u32 {sr(S_KC)}, {sr(S_KC)}, 1")
            a.emit(f"s_cmp_eq_u32 {sr(S_KC)}, 10")
            a.emit(f"s_cselect_b32 {sr(S_KC)}, 0, {sr(S_KC)}")
            a.emit(f"s_cselect_b32 {sr(S_T)}, {-9*128}, {sr(S_K3)}")
            a.emit(f"s_cselect_b32 {sr(S_T2)}, {sr(S_K2)}, {sr(S_WADV)}")
            a.emit(f"s_cselect_b32 {sr(S_K1)}, {-9*2560}, {sr(S_K4)}")
            a.emit(f"s_ashr_i32 {sr(S_ROT)}, {sr(S_T)}, 31")
            a.emit(f"s_add_u32 {sr(S_X)}, {sr(S_X)}, {sr(S_T)}")
            a.emit(f"s_addc_u32 {sr(S_X+1)}, {sr(S_X+1)}, {sr(S_ROT)}")
            a.emit(f"s_add_u32 {sr(S_WB)}, {sr(S_WB)}, {sr(S_T2)}")
            a.emit(f"s_addc_u32 {sr(S_WB+1)}, {sr(S_WB+1)}, {sr(S_ROT)}")
        for n in range(5):
            a.emit(f"s_add_u32 m0, {sr(S_M0W)}, {buf*STAGE + n*1024}")
            a.emit(f"global_load_lds_dwordx4 {vr(V_LO+4+n)}, {sr(S_WB,2)}")
        for n in range(4):
            a.emit(f"s_add_u32 m0, {sr(S_M0X)}, {buf*STAGE + n*1024}")
            a.emit(f"global_load_lds_dwordx4 {vr(V_LO+n)}, {sr(S_X,2)}")
        if extra:
            if c > 0:
                a.emit(f"s_add_u32 {sr(S_EX)}, {sr(S_EX)}, {sr(S_K1)}")
                a.emit(f"s_addc_u32 {sr(S_EX+1)}, {sr(S_EX+1)}, {sr(S_ROT)}")
            a.emit(f"s_add_u32 m0, {sr(S_M0E)}, {buf*2560}")
            a.emit(f"s_mov_b64 exec, {sr(S_EXM,2)}")
            a.emit(f"global_load_lds_dwordx4 {vr(V_LO+9)}, {sr(S_EX,2)}")
            a.emit("s_mov_b64 exec, -1")
    def loader(extra, tag):
        n = 10 if extra else 9
        a.emit(f"s_mov_b32 {sr(S_K3)}, 128")
        a.emit(f"s_mov_b32 {sr(S_K4)}, 2560")
        issued = []
        for c in (0, 1): chunk(c, extra); issued.append(c)
        for c in range(10):
            after = len([x for x in issued if x > c])
            a.emit(f"s_waitcnt vmcnt({n*after})")
            a.emit("s_barrier")
            if c + 2 < 10: chunk(c + 2, extra); issued.append(c + 2)
        a.emit("s_barrier")
        a.emit(f"s_branch {name}_ldend")
    a.emit(f"s_cmp_eq_u32 {sr(S_ROLE)}, 1")
    a.emit(f"s_cbranch_scc1 {name}_ldx")
    a.emit(f"s_cmp_eq_u32 {sr(S_ROLE)}, 2")
    a.emit(f"s_cbranch_scc1 {name}_ldx")
    a.emit(f"s_cmp_lt_u32 {sr(S_ROLE)}, 3")
    a.emit(f"s_cbranch_scc1 {name}_ldp")
    a.emit(f"s_cmp_eq_u32 {sr(S_ROLE)}, 3")
    a.emit(f"s_mov_b32 {sr(S_T)}, 3200")
    a.emit(f"s_cselect_b32 {sr(S_T)}, 6400, {sr(S_T)}")
    a.emit(f"s_mul_i32 {sr(S_T)}, {sr(S_T)}, {sr(S_G)}")
    for rep in range(2):
        a.emit(f"s_lshl_b32 {sr(S_T2)}, {sr(S_W)}, 10")
        a.emit(f"s_add_u32 {sr(S_T2)}, {sr(S_T2)}, {rep*4096}")
        a.emit(f"s_add_u32 m0, {sr(S_T2)}, {EXTRA}")
        a.emit(f"s_add_u32 {sr(S_T2)}, {sr(S_T2)}, {sr(S_T)}")
        a.emit(f"v_add_u32 {vr(V_T0)}, {sr(S_T2)}, {vr(V_L16)}")
        a.emit(f"v_min_u32 {vr(V_T0)}, 25584, {vr(V_T0)}")
        a.emit(f"global_load_lds_dwordx4 {vr(V_T0)}, s[56:57]")
    a.label(f"{name}_ldp")
    loader(False, "p")
    a.label(f"{name}_ldx")
    loader(True, "x")
    a.label(f"{name}_ldend")
    a.emit("s_load_dwordx2 s[44:45], s[0:1], 32")
    a.emit("s_load_dwordx2 s[46:47], s[0:1], 64")
    a.emit(f"s_lshr_b32 {sr(S_T)}, s2, 3")
    a.emit(f"s_mul_i32 {sr(S_T)}, {sr(S_T)}, 200")
    a.emit(f"s_lshl_b32 {sr(S_T2)}, {sr(S_W)}, 6")
    a.emit(f"s_add_u32 {sr(S_T)}, {sr(S_T)}, {sr(S_T2)}")
    a.emit(f"v_add_u32 {vr(V_T0)}, {sr(S_T)}, {vr(V_LANE)}")
    a.emit(f"v_min_u32 {vr(V_T0)}, 6399, {vr(V_T0)}")
    a.emit(f"v_lshlrev_b32 {vr(V_T0)}, 7, {vr(V_T0)}")
    a.emit(f"s_and_b32 {sr(S_T)}, s2, 4")
    a.emit(f"s_cmp_eq_u32 {sr(S_T)}, 0")
    a.emit("s_waitcnt lgkmcnt(0)")
    a.emit(f"s_cselect_b32 s44, s44, s46")
    a.emit(f"s_cselect_b32 s45, s45, s47")
    a.emit(f"global_load_dword {vr(V_T1)}, {vr(V_T0)}, s[44:45]")
    a.emit(f"s_cmp_eq_u32 {sr(S_ROLE)}, 4")
    a.emit(f"s_cbranch_scc0 {name}_fin")
    a.emit("s_barrier"); a.emit("s_barrier")
    a.label(f"{name}_fin")
    nstamp(a, "P1epi", prof)
```

```python
from asm import *
from layout import *
from common import *

O_ = 0; Q1_ = 64; Q2_ = 80; SH_ = 88; S_ = 96; P_ = 128; KV_ = 144
M_ = 208
V_L16 = M_; V_LANE = M_ + 1
V_T0 = M_ + 2; V_T1 = M_ + 3; V_T2 = M_ + 4; V_T3 = M_ + 5
V_KM = M_ + 6
V_AD = M_ + 7
V_WR = M_ + 10; V_RD = M_ + 11
V_AB = M_ + 12
V_RC = M_ + 15
V_Z = M_ + 16
S_KV = 6; S_Q = 8
S_W = 10; S_QB = 11; S_KQ = 12; S_CNT = 13; S_T = 14; S_T2 = 15
S_MLO = 16; S_MHI = 18
S_RB = 20; S_HG = 21; S_C60 = 22; S_YIELD = 23
S_OA = 24; S_HEAD = 26
S_KV0 = 28; S_LO = 30
S_PB = 32; S_OB = 36; S_PQ = 38; S_DM = 40; S_T3 = 42; S_T4 = 43; S_HB = 44
S_KR = 46
S_RC = 48
IMG_A = 122880; IMG_B = IMG_A + 10240
LD = " sc1"

def kvload(a, b):
    base = KV_ + 16 * b
    for f in range(4):
        a.emit(f"global_load_dwordx4 {vr(base+4*f,4)}, {vr(V_L16)}, {sr(S_KV,2)} offset:{1024*f}{LD}")
def kvadv(a):
    a.emit(f"s_add_u32 {sr(S_KV)}, {sr(S_KV)}, 4096")
    a.emit(f"s_addc_u32 {sr(S_KV+1)}, {sr(S_KV+1)}, 0")
def qk(a, Sd, Kb, j):
    return [lambda: mfma(a, Sd, Kb, Q1_ + 4 * j, None),
            lambda: mfma8(a, Sd, Kb + 4 + 2 * (j & 1), Q2_ + 2 * j, Sd)]

def slot(a, n, name, yield_at):
    j = n & 3
    nn = n + 1; tn = (nn >> 2) & 3; jn = nn & 3
    pp = n - 1; tp = (pp >> 2) & 3; jp = pp & 3
    Sc = S_ + 16 * (n & 1); Sn = S_ + 16 * (nn & 1)
    Pc = P_ + 8 * (n & 1); Pp = P_ + 8 * (pp & 1)
    Kn = KV_ + 16 * tn; Vp = KV_ + 16 * tp + 8
    ms = qk(a, Sn, Kn, jn) + [
          lambda: mfma(a, O_ + 16 * jp, Vp, Pp, O_ + 16 * jp),
          lambda: mfma(a, O_ + 16 * jp, Vp + 4, Pp + 4, O_ + 16 * jp)]
    for g in range(4):
        ms[g]()
        for i in range(4):
            a.emit(f"v_exp_f32 {vr(Sc+4*g+i)}, {vr(Sc+4*g+i)}")
        a.emit(f"v_cvt_pk_bf16_f32 {vr(Pc+2*g)}, {vr(Sc+4*g)}, {vr(Sc+4*g+1)}")
        a.emit(f"v_cvt_pk_bf16_f32 {vr(Pc+2*g+1)}, {vr(Sc+4*g+2)}, {vr(Sc+4*g+3)}")
    if j == 2:
        t = n >> 2
        a.emit("s_waitcnt vmcnt(4)")
        kvadv(a)
        if n == 2:
            a.emit(f"s_cmp_eq_u32 {sr(S_CNT)}, 1")
            a.emit(f"s_cbranch_scc0 {name}_norc")
            a.emit(f"global_load_dword {vr(V_RC)}, {vr(V_T3)}, {sr(S_WS,2)} sc1")
            a.label(f"{name}_norc")
        if n == yield_at:
            a.emit(f"s_cmp_eq_u32 {sr(S_CNT)}, {sr(S_YIELD)}")
            a.emit(f"s_cbranch_scc0 {name}_noyield")
            a.emit("s_setprio 0")
            a.label(f"{name}_noyield")
        if n == 14:
            a.emit(f"s_sub_u32 {sr(S_CNT)}, {sr(S_CNT)}, 1")
            a.emit(f"s_cmp_lg_u32 {sr(S_CNT)}, 0")
        kvload(a, (t + 3) & 3)

def build_q2(a, T0regs, T1regs):
    for j in range(4):
        p = j >> 1
        m = S_MLO if (j & 1) == 0 else S_MHI
        a.emit(f"v_cndmask_b32 {vr(Q2_+2*j)}, {T0regs[j]}, {vr(SH_+4*p)}, {sr(m,2)}")
        a.emit(f"v_cndmask_b32 {vr(Q2_+2*j+1)}, {T1regs[j]}, {vr(SH_+4*p+1)}, {sr(m,2)}")

def img_addrs(a, dst, s_hl, base):
    def sa(dsts):
        a.emit(f"s_lshr_b32 {sr(dsts)}, {sr(S_T3)}, 2")
        a.emit(f"s_lshl_b32 {sr(dsts)}, {sr(dsts)}, 10")
        a.emit(f"s_bfe_u32 {sr(S_T4)}, {sr(S_T3)}, 0x10001")
        a.emit(f"s_lshl_b32 {sr(S_T4)}, {sr(S_T4)}, 9")
        a.emit(f"s_add_u32 {sr(dsts)}, {sr(dsts)}, {sr(S_T4)}")
        a.emit(f"s_and_b32 {sr(S_T4)}, {sr(S_T3)}, 1")
        a.emit(f"s_lshl_b32 {sr(S_T4)}, {sr(S_T4)}, 3")
        a.emit(f"s_add_u32 {sr(dsts)}, {sr(dsts)}, {sr(S_T4)}")
    a.emit(f"s_mul_i32 {sr(S_T3)}, {sr(s_hl)}, 5")
    for k in range(3):
        sa(S_T)
        a.emit(f"s_add_u32 {sr(S_T3)}, {sr(S_T3)}, 1")
        sa(S_T2)
        a.emit(f"s_add_u32 {sr(S_T3)}, {sr(S_T3)}, 1")
        a.emit(f"s_sub_u32 {sr(S_T2)}, {sr(S_T2)}, {sr(S_T)}")
        a.emit(f"s_add_u32 {sr(S_T)}, {sr(S_T)}, {base}")
        a.emit(f"v_add_u32 {vr(dst+k)}, {sr(S_T)}, {vr(V_T1)}")
        if k < 2: a.emit(f"v_mad_u32_u24 {vr(dst+k)}, {vr(V_T0)}, {sr(S_T2)}, {vr(dst+k)}")

def finalize(a, R, addr, eps=None):
    a.emit(f"v_mov_b32 {vr(V_T2)}, {vr(R+8)}")
    a.emit(f"v_mov_b32 {vr(V_T3)}, {vr(R+8)}")
    a.emit(f"v_permlane32_swap_b32 {vr(V_T2)}, {vr(V_T3)}")
    if eps is not None:
        a.emit(f"v_add_f32 {vr(V_T3)}, {eps}, {vr(V_T3)}")
    a.emit(f"v_rcp_f32 {vr(V_T2)}, {vr(V_T3)}")
    for i in range(6):
        a.emit(f"v_pk_mul_f32 {vr(R+2*i,2)}, {vr(R+2*i,2)}, {vr(V_T2,2)} op_sel_hi:[1,0]")
    for i in range(6):
        a.emit(f"v_cvt_pk_bf16_f32 {vr(R+12+i)}, {vr(R+2*i)}, {vr(R+2*i+1)}")
    a.emit(f"ds_write_b64 {vr(addr)}, {vr(R+12,2)}")
    a.emit(f"ds_write_b64 {vr(addr+1)}, {vr(R+14,2)}")
    a.emit(f"s_mov_b64 exec, {sr(S_MLO,2)}")
    a.emit(f"ds_write_b64 {vr(addr+2)}, {vr(R+16,2)}")
    a.emit("s_mov_b64 exec, -1")

def phase2(a, prof, yield_at=10):
    name = "P2"
    a.emit("s_setprio 3")
    a.emit(f"v_mov_b32 {vr(V_LANE)}, {vr(V_LANE_G)}")
    a.emit(f"v_mov_b32 {vr(V_L16)}, {vr(V_L16_G)}")
    a.emit(f"s_mov_b32 {sr(S_W)}, {sr(S_WG)}")
    a.emit(f"s_and_b32 {sr(S_QB)}, {sr(S_W)}, 1")
    a.emit(f"s_lshr_b32 {sr(S_KQ)}, {sr(S_W)}, 1")
    a.emit(f"s_lshr_b32 {sr(S_RB)}, s2, 2")
    a.emit(f"s_and_b32 {sr(S_HG)}, s2, 3")
    a.emit(f"s_lshl_b32 {sr(S_HEAD)}, {sr(S_HG)}, 3")
    a.emit(f"s_lshl_b32 {sr(S_T)}, {sr(S_QB)}, 2")
    a.emit(f"s_add_u32 {sr(S_HEAD)}, {sr(S_HEAD)}, {sr(S_T)}")
    a.emit(f"s_lshl_b32 {sr(S_T)}, {sr(S_RB)}, 4")
    a.emit(f"s_lshr_b32 {sr(S_T2)}, {sr(S_HEAD)}, 1")
    a.emit(f"s_add_u32 {sr(S_T)}, {sr(S_T)}, {sr(S_T2)}")
    a.emit(f"s_mul_i32 {sr(S_T)}, {sr(S_T)}, 3072")
    a.emit(f"s_add_u32 {sr(S_T)}, {sr(S_T)}, {WS_QF}")
    a.emit(f"s_lshl_b32 {sr(S_T2)}, {sr(S_KQ)}, 16")
    a.emit(f"s_add_u32 {sr(S_T2)}, {sr(S_T2)}, {WS_KV}")
    a.emit(f"v_lshlrev_b32 {vr(V_T1)}, 2, {vr(V_LANE)}")
    a.emit(f"v_add_u32 {vr(V_T2)}, 3072, {vr(V_L16)}")
    a.emit(f"s_add_u32 {sr(S_Q)}, {sr(S_WS)}, {sr(S_T)}")
    a.emit(f"s_addc_u32 {sr(S_Q+1)}, {sr(S_WS+1)}, 0")
    a.emit(f"s_add_u32 {sr(S_KV)}, {sr(S_WS)}, {sr(S_T2)}")
    a.emit(f"s_addc_u32 {sr(S_KV+1)}, {sr(S_WS+1)}, 0")
    a.emit(f"s_add_u32 {sr(S_OA)}, {sr(S_WS)}, {WS_KMAX}")
    a.emit(f"s_addc_u32 {sr(S_OA+1)}, {sr(S_WS+1)}, 0")
    return name

def phase2_after_barrier(a, prof, yield_at=10):
    name = "P2"
    a.emit(f"global_load_dword {vr(V_KM)}, {vr(V_T1)}, {sr(S_OA,2)}{LD}")
    for p in range(2):
        av = V_L16 if p == 0 else V_T2
        a.emit(f"global_load_dwordx4 {vr(SH_+4*p,4)}, {vr(av)}, {sr(S_Q,2)} offset:2048{LD}")
        a.emit(f"global_load_dwordx4 {vr(Q1_+8*p,4)}, {vr(av)}, {sr(S_Q,2)}{LD}")
        a.emit(f"global_load_dwordx4 {vr(Q1_+8*p+4,4)}, {vr(av)}, {sr(S_Q,2)} offset:1024{LD}")
    kvload(a, 0); kvadv(a); kvload(a, 1); kvadv(a); kvload(a, 2)
    KR = O_
    a.emit(f"s_cmp_eq_u32 {sr(S_W)}, 7")
    a.emit(f"s_cbranch_scc0 {name}_nokr")
    a.emit(f"s_and_b32 {sr(S_T)}, s2, 31")
    a.emit(f"s_mul_i32 {sr(S_T)}, {sr(S_T)}, 5120")
    a.emit(f"s_add_u32 {sr(S_T)}, {sr(S_T)}, {WS_KVP}")
    a.emit(f"s_add_u32 {sr(S_PB)}, {sr(S_WS)}, {sr(S_T)}")
    a.emit(f"s_addc_u32 {sr(S_PB+1)}, {sr(S_WS+1)}, 0")
    a.emit(f"s_lshr_b32 {sr(S_T)}, s2, 5")
    a.emit(f"s_lshl_b32 {sr(S_T)}, {sr(S_T)}, 3")
    a.emit(f"v_and_b32 {vr(V_T0)}, 7, {vr(V_LANE)}")
    a.emit(f"v_add_u32 {vr(V_T0)}, {sr(S_T)}, {vr(V_T0)}")
    a.emit(f"v_lshrrev_b32 {vr(V_T3)}, 3, {vr(V_LANE)}")
    a.emit(f"v_lshlrev_b32 {vr(V_RC)}, 10, {vr(V_T3)}")
    a.emit(f"v_lshl_add_u32 {vr(V_RC)}, {vr(V_T0)}, 4, {vr(V_RC)}")
    a.emit(f"s_mov_b32 exec_lo, -1")
    a.emit(f"s_mov_b32 exec_hi, 0xff")
    for rb in range(16):
        a.emit(f"global_load_dwordx4 {vr(KR+4*rb,4)}, {vr(V_RC)}, {sr(S_PB,2)}{LD}")
        if rb < 15:
            a.emit(f"s_add_u32 {sr(S_PB)}, {sr(S_PB)}, {32*5120}")
            a.emit(f"s_addc_u32 {sr(S_PB+1)}, {sr(S_PB+1)}, 0")
    a.emit("s_mov_b64 exec, -1")
    a.emit(f"v_and_b32 {vr(V_AB)}, 1, {vr(V_T3)}")
    a.emit(f"v_lshlrev_b32 {vr(V_AB)}, 3, {vr(V_AB)}")
    a.emit(f"v_lshl_add_u32 {vr(V_AB)}, {vr(V_T0)}, 4, {vr(V_AB)}")
    a.emit(f"v_lshrrev_b32 {vr(V_AB+1)}, 1, {vr(V_T3)}")
    a.emit(f"v_lshl_add_u32 {vr(V_AB)}, {vr(V_AB+1)}, 10, {vr(V_AB)}")
    a.emit(f"v_lshlrev_b32 {vr(V_AB+1)}, 3, {vr(V_T0)}")
    a.emit(f"v_add_u32 {vr(V_AB+1)}, 2048, {vr(V_AB+1)}")
    a.emit(f"v_cmp_eq_u32 vcc, 4, {vr(V_T3)}")
    a.emit(f"v_cndmask_b32 {vr(V_AB)}, {vr(V_AB)}, {vr(V_AB+1)}, vcc")
    a.emit("s_waitcnt vmcnt(0)")
    for st in (8, 4, 2, 1):
        for rb in range(st):
            a.emit(f"v_pk_add_f32 {vr(KR+4*rb,2)}, {vr(KR+4*rb,2)}, {vr(KR+4*(rb+st),2)}")
            a.emit(f"v_pk_add_f32 {vr(KR+4*rb+2,2)}, {vr(KR+4*rb+2,2)}, {vr(KR+4*(rb+st)+2,2)}")
    a.emit(f"v_cvt_pk_bf16_f32 {vr(KR)}, {vr(KR)}, {vr(KR+1)}")
    a.emit(f"v_cvt_pk_bf16_f32 {vr(KR+1)}, {vr(KR+2)}, {vr(KR+3)}")
    a.emit(f"s_and_b32 {sr(S_T)}, s2, 31")
    a.emit(f"s_mul_i32 {sr(S_T2)}, {sr(S_T)}, 2560")
    a.emit(f"s_add_u32 {sr(S_T2)}, {sr(S_T2)}, {WS_KVR}")
    a.emit(f"v_add_u32 {vr(V_AB)}, {sr(S_T2)}, {vr(V_AB)}")
    a.emit(f"s_mov_b32 exec_lo, -1")
    a.emit(f"s_mov_b32 exec_hi, 0xff")
    a.emit(f"global_store_dwordx2 {vr(V_AB)}, {vr(KR,2)}, {sr(S_WS,2)} sc1")
    a.emit("s_mov_b64 exec, -1")
    a.emit(f"s_lshl_b32 {sr(S_T)}, {sr(S_T)}, 7")
    a.emit(f"s_add_u32 {sr(S_T)}, {sr(S_T)}, {WS_CNT + 4096}")
    a.emit(f"v_mov_b32 {vr(V_AB)}, {sr(S_T)}")
    a.emit(f"v_mov_b32 {vr(V_AB+1)}, 1")
    a.emit("s_waitcnt vmcnt(0)")
    a.emit("s_mov_b64 exec, 1")
    a.emit(f"global_atomic_add {vr(V_AB)}, {vr(V_AB+1)}, {sr(S_WS,2)} sc1")
    a.emit("s_mov_b64 exec, -1")
    a.label(f"{name}_nokr")
    a.emit(f"s_mov_b32 {sr(S_MLO)}, -1")
    a.emit(f"s_mov_b32 {sr(S_MLO+1)}, 0")
    a.emit(f"s_mov_b32 {sr(S_MHI)}, 0")
    a.emit(f"s_mov_b32 {sr(S_MHI+1)}, -1")
    a.emit(f"s_mov_b32 {sr(S_C60)}, 0x42700000")
    a.emit(f"s_cmp_lt_u32 {sr(S_W)}, 4")
    a.emit(f"s_cselect_b32 {sr(S_YIELD)}, 1, 99")
    for i in range(4): a.emit(f"v_mov_b32 {vr(V_Z+i)}, 0")
    for i in range(8): a.emit(f"v_mov_b32 {vr(P_+8+i)}, 0")
    for j in range(4): mfma(a, O_ + 16 * j, V_Z, V_Z, None)
    for i in range(8): a.emit(f"v_mov_b32 {vr(KV_+48+8+i)}, 0")
    a.emit(f"s_mul_i32 {sr(S_T)}, {sr(S_QB)}, {12*3072}")
    a.emit(f"v_add_u32 {vr(V_WR)}, {sr(S_T)}, {vr(V_L16)}")
    a.emit(f"s_mul_i32 {sr(S_T2)}, {sr(S_KQ)}, {3*3072}")
    a.emit(f"s_add_u32 {sr(S_T)}, {sr(S_T)}, {sr(S_T2)}")
    a.emit(f"v_add_u32 {vr(V_RD)}, {sr(S_T)}, {vr(V_L16)}")
    a.emit(f"v_lshrrev_b32 {vr(V_T0)}, 5, {vr(V_LANE)}")
    a.emit(f"v_and_b32 {vr(V_T1)}, 31, {vr(V_LANE)}")
    a.emit(f"v_lshlrev_b32 {vr(V_T1)}, 4, {vr(V_T1)}")
    a.emit(f"s_lshl_b32 {sr(S_HB)}, {sr(S_QB)}, 2")
    a.emit(f"s_add_u32 {sr(S_HB)}, {sr(S_HB)}, {sr(S_KQ)}")
    img_addrs(a, V_AD, S_HB, IMG_A)
    img_addrs(a, V_AB, S_W, IMG_B)
    a.emit(f"s_lshl_b32 {sr(S_T)}, {sr(S_RB)}, 4")
    a.emit(f"s_lshl_b32 {sr(S_T2)}, {sr(S_HG)}, 2")
    a.emit(f"s_add_u32 {sr(S_T)}, {sr(S_T)}, {sr(S_T2)}")
    a.emit(f"s_add_u32 {sr(S_T)}, {sr(S_T)}, {sr(S_KQ)}")
    a.emit(f"s_mul_i32 {sr(S_T)}, {sr(S_T)}, 5120")
    a.emit(f"s_add_u32 {sr(S_T)}, {sr(S_T)}, {WS_PHIQ}")
    a.emit(f"s_add_u32 {sr(S_PQ)}, {sr(S_WS)}, {sr(S_T)}")
    a.emit(f"s_addc_u32 {sr(S_PQ+1)}, {sr(S_WS+1)}, 0")
    a.emit(f"s_lshl_b32 {sr(S_T)}, {sr(S_HG)}, 3")
    a.emit(f"s_add_u32 {sr(S_T)}, {sr(S_T)}, {sr(S_W)}")
    a.emit(f"s_mul_i32 {sr(S_T2)}, {sr(S_T)}, 2560")
    a.emit(f"s_add_u32 {sr(S_T2)}, {sr(S_T2)}, {WS_KVR}")
    a.emit(f"s_add_u32 {sr(S_KR)}, {sr(S_WS)}, {sr(S_T2)}")
    a.emit(f"s_addc_u32 {sr(S_KR+1)}, {sr(S_WS+1)}, 0")
    a.emit(f"s_lshl_b32 {sr(S_RC)}, {sr(S_T)}, 7")
    a.emit(f"s_add_u32 {sr(S_RC)}, {sr(S_RC)}, {WS_CNT + 4096}")
    a.emit(f"s_mul_i32 {sr(S_T)}, {sr(S_RB)}, 40")
    a.emit(f"s_mul_i32 {sr(S_T2)}, {sr(S_HG)}, 10")
    a.emit(f"s_add_u32 {sr(S_T)}, {sr(S_T)}, {sr(S_T2)}")
    a.emit(f"s_lshl_b32 {sr(S_T)}, {sr(S_T)}, 10")
    a.emit(f"s_add_u32 {sr(S_T)}, {sr(S_T)}, {WS_OA}")
    a.emit("s_waitcnt vmcnt(18)")
    for r in (8, 4, 2, 1):
        a.emit(f"v_max_f32_dpp {vr(V_KM)}, {vr(V_KM)}, {vr(V_KM)} row_ror:{r} row_mask:0xf bank_mask:0xf")
    a.emit(f"v_readlane_b32 {sr(S_T3)}, {vr(V_KM)}, 0")
    a.emit(f"v_readlane_b32 {sr(S_T2)}, {vr(V_KM)}, 16")
    a.emit(f"v_readlane_b32 {sr(S_LO)}, {vr(V_KM)}, 32")
    a.emit(f"v_readlane_b32 {sr(S_LO+1)}, {vr(V_KM)}, 48")
    a.emit(f"s_max_u32 {sr(S_T3)}, {sr(S_T3)}, {sr(S_T2)}")
    a.emit(f"s_max_u32 {sr(S_LO)}, {sr(S_LO)}, {sr(S_LO+1)}")
    a.emit(f"s_max_u32 {sr(S_T3)}, {sr(S_T3)}, {sr(S_LO)}")
    a.emit(f"v_sqrt_f32 {vr(V_KM)}, {sr(S_T3)}")
    a.emit(f"s_add_u32 {sr(S_OA)}, {sr(S_WS)}, {sr(S_T)}")
    a.emit(f"s_addc_u32 {sr(S_OA+1)}, {sr(S_WS+1)}, 0")
    a.emit(f"v_mul_f32 {vr(V_KM)}, 0x3f828f5c, {vr(V_KM)}")
    a.emit(f"v_mov_b32 {vr(V_T3)}, {sr(S_RC)}")
    a.emit("s_waitcnt vmcnt(14)")
    for p in range(2):
        a.emit(f"v_fma_f32 {vr(SH_+4*p+3)}, -{vr(SH_+4*p+2)}, {vr(V_KM)}, {sr(S_C60)}")
    for p in range(2):
        a.emit(f"v_cvt_pk_bf16_f32 {vr(SH_+4*p+3)}, {vr(SH_+4*p+3)}, 0")
    build_q2(a, [vr(SH_ + 4 * (j >> 1) + 3) for j in range(4)], ["0"] * 4)
    a.emit("s_waitcnt vmcnt(8)")
    for m in qk(a, S_, KV_, 0): m()
    nstamp(a, "loop", prof)
    if prof: a.emit("s_waitcnt lgkmcnt(0)")
    a.emit(f"s_mov_b32 {sr(S_CNT)}, 4")
    a.emit(f"s_cmp_lt_u32 {sr(S_W)}, 4")
    a.emit(f"s_cbranch_scc1 {name}_p2")
    a.emit("s_setprio 1")
    a.emit(f"s_branch {name}_p3")
    a.label(f"{name}_p2")
    a.emit("s_setprio 2")
    a.label(f"{name}_p3")
    a.emit("s_nop 7")
    a.emit("s_nop 7")
    a(".p2align 6")
    a.label(f"{name}_loop")
    for n in range(16):
        slot(a, n, name, yield_at)
    a.emit(f"s_cbranch_scc1 {name}_loop")
    nstamp(a, "loopend", prof)
    mfma(a, O_ + 48, KV_ + 48 + 8, P_ + 8, O_ + 48)
    mfma(a, O_ + 48, KV_ + 48 + 12, P_ + 12, O_ + 48)
    PQ = KV_; AFR = KV_ + 16
    a.emit("s_waitcnt vmcnt(0)")
    a.label(f"{name}_rc")
    a.emit(f"v_readfirstlane_b32 {sr(S_T)}, {vr(V_RC)}")
    a.emit(f"s_cmp_ge_u32 {sr(S_T)}, 8")
    a.emit(f"s_cbranch_scc1 {name}_rcok")
    a.emit(f"s_mov_b32 s60, {SPIN}")
    a.label(f"{name}_rcspin")
    a.emit(f"global_load_dword {vr(V_RC)}, {vr(V_T3)}, {sr(S_WS,2)} sc1")
    a.emit("s_waitcnt vmcnt(0)")
    a.emit(f"v_readfirstlane_b32 {sr(S_T)}, {vr(V_RC)}")
    a.emit("s_sub_u32 s60, s60, 1")
    a.emit("s_cmp_eq_u32 s60, 0")
    a.emit(f"s_cbranch_scc1 {name}_rcok")
    a.emit(f"s_cmp_lt_u32 {sr(S_T)}, 8")
    a.emit(f"s_cbranch_scc1 {name}_rcspin")
    a.label(f"{name}_rcok")
    a.emit(f"s_lshl_b32 {sr(S_T)}, {sr(S_QB)}, 11")
    a.emit(f"v_add_u32 {vr(V_T0)}, {sr(S_T)}, {vr(V_L16)}")
    a.emit(f"s_lshl_b32 {sr(S_T)}, {sr(S_QB)}, 3")
    a.emit(f"s_add_u32 {sr(S_T)}, {sr(S_T)}, 4096")
    a.emit(f"v_add_u32 {vr(V_T1)}, {sr(S_T)}, {vr(V_L16)}")
    a.emit(f"v_lshlrev_b32 {vr(V_T2)}, 3, {vr(V_LANE)}")
    a.emit(f"global_load_dwordx4 {vr(PQ,4)}, {vr(V_T0)}, {sr(S_PQ,2)}{LD}")
    a.emit(f"global_load_dwordx4 {vr(PQ+4,4)}, {vr(V_T0)}, {sr(S_PQ,2)} offset:1024{LD}")
    a.emit(f"global_load_dwordx2 {vr(PQ+8,2)}, {vr(V_T1)}, {sr(S_PQ,2)}{LD}")
    a.emit(f"global_load_dwordx4 {vr(AFR,4)}, {vr(V_L16)}, {sr(S_KR,2)}{LD}")
    a.emit(f"global_load_dwordx4 {vr(AFR+4,4)}, {vr(V_L16)}, {sr(S_KR,2)} offset:1024{LD}")
    a.emit(f"global_load_dwordx2 {vr(AFR+8,2)}, {vr(V_T2)}, {sr(S_KR,2)} offset:2048{LD}")
    R = S_
    for kq in range(4):
        if kq < 3:
            a.emit(f"s_cmp_lg_u32 {sr(S_KQ)}, {kq}")
            a.emit(f"s_cbranch_scc1 {name}_red{kq+1}")
        order = [j for j in (0, 1, 2, 3) if j != kq]
        for j in order:
            src = (kq - j - 1) & 3
            if j == 3: a.emit("s_nop 7")
            for f in range(3):
                a.emit(f"ds_write_b128 {vr(V_WR)}, {vr(O_+16*j+4*f,4)} offset:{(j*3+src)*3072+f*1024}")
        a.emit("s_waitcnt lgkmcnt(0)")
        a.emit("s_barrier")
        for s in range(3):
            for f in range(3):
                a.emit(f"ds_read_b128 {vr(R+12*s+4*f,4)}, {vr(V_RD)} offset:{s*3072+f*1024}")
        if kq == 3: a.emit("s_nop 3")
        a.emit("s_waitcnt lgkmcnt(6)")
        for i in range(6):
            a.emit(f"v_pk_add_f32 {vr(R+2*i,2)}, {vr(R+2*i,2)}, {vr(O_+16*kq+2*i,2)}")
        if kq < 3:
            a.emit(f"s_branch {name}_redj")
            a.label(f"{name}_red{kq+1}")
    a.label(f"{name}_redj")
    nstamp(a, "redbar", prof)
    D = O_ + 32
    a.emit(f"v_mov_b32 {vr(AFR+10)}, 0"); a.emit(f"v_mov_b32 {vr(AFR+11)}, 0")
    a.emit(f"v_mov_b32 {vr(PQ+10)}, 0"); a.emit(f"v_mov_b32 {vr(PQ+11)}, 0")
    a.emit("s_waitcnt lgkmcnt(0)")
    for i in range(6):
        a.emit(f"v_pk_add_f32 {vr(R+12+2*i,2)}, {vr(R+12+2*i,2)}, {vr(R+24+2*i,2)}")
    a.emit("s_waitcnt vmcnt(0)")
    mfma(a, D, AFR, PQ, None)
    mfma(a, D, AFR + 4, PQ + 4, D)
    mfma(a, D, AFR + 8, PQ + 8, D)
    for i in (4, 5, 0, 1, 2, 3):
        a.emit(f"v_pk_add_f32 {vr(R+2*i,2)}, {vr(R+2*i,2)}, {vr(R+12+2*i,2)}")
    finalize(a, R, V_AD)
    a.emit(f"s_mov_b32 {sr(S_T)}, 0x21800000")
    a.emit(f"s_mov_b32 {sr(S_T2)}, 0x7b800000")
    a.emit(f"v_cmp_le_f32 vcc, {sr(S_T)}, {vr(V_T3)}")
    a.emit(f"v_cmp_ge_f32 {sr(S_LO,2)}, {sr(S_T2)}, {vr(V_T3)}")
    a.emit("s_nop 1")
    a.emit(f"s_and_b64 vcc, vcc, {sr(S_LO,2)}")
    a.emit("s_cmp_eq_u64 vcc, -1")
    a.emit(f"s_cbranch_scc0 {name}_fb")
    a.label(f"{name}_afterA")
    finalize(a, D, V_AB, eps="0x358637bd")
    a.emit("s_waitcnt lgkmcnt(0)")
    a.emit("s_barrier")
    nstamp(a, "imgbar", prof)
    for rep in range(3):
        if rep == 2:
            a.emit(f"s_cmp_ge_u32 {sr(S_W)}, 4")
            a.emit(f"s_cbranch_scc1 {name}_stdone")
        a.emit(f"s_add_u32 {sr(S_T)}, {sr(S_W)}, {8*rep}")
        a.emit(f"s_lshl_b32 {sr(S_T2)}, {sr(S_T)}, 10")
        a.emit(f"s_add_u32 {sr(S_T3)}, {sr(S_T2)}, {IMG_A}")
        a.emit(f"v_add_u32 {vr(V_T0)}, {sr(S_T3)}, {vr(V_L16)}")
        a.emit(f"ds_read_b128 {vr(R+4*rep,4)}, {vr(V_T0)}")
        a.emit(f"s_cmp_ge_u32 {sr(S_T)}, 10")
        a.emit(f"s_cselect_b32 {sr(S_T3)}, {WS_OB - WS_OA - 10240}, 0")
        a.emit(f"s_add_u32 {sr(S_T2)}, {sr(S_T2)}, {sr(S_T3)}")
        a.emit(f"v_add_u32 {vr(V_AD+rep)}, {sr(S_T2)}, {vr(V_L16)}")
    a.emit("s_waitcnt lgkmcnt(0)")
    a.emit(f"global_store_dwordx4 {vr(V_AD+2)}, {vr(R+8,4)}, {sr(S_OA,2)} sc1")
    a.label(f"{name}_stdone")
    a.emit("s_waitcnt lgkmcnt(0)")
    a.emit(f"global_store_dwordx4 {vr(V_AD)}, {vr(R,4)}, {sr(S_OA,2)} sc1")
    a.emit(f"global_store_dwordx4 {vr(V_AD+1)}, {vr(R+4,4)}, {sr(S_OA,2)} sc1")
    a.emit(f"s_branch {name}_done")
    a.label(f"{name}_fb")
    FQ1 = S_ + 24; FQ2 = S_ + 28; FSH = S_ + 30
    FO = P_; FS = KV_ + 32; FK = KV_ + 48; FP = O_
    FA = V_WR; FM = V_RD
    FK = O_ + 8
    for kq in range(4):
        if kq < 3:
            a.emit(f"s_cmp_lg_u32 {sr(S_KQ)}, {kq}")
            a.emit(f"s_cbranch_scc1 {name}_fq{kq+1}")
        for i in range(4): a.emit(f"v_mov_b32 {vr(FQ1+i)}, {vr(Q1_+4*kq+i)}")
        for i in range(2): a.emit(f"v_mov_b32 {vr(FSH+i)}, {vr(SH_+4*(kq>>1)+i)}")
        if kq < 3:
            a.emit(f"s_branch {name}_fqj")
            a.label(f"{name}_fq{kq+1}")
    a.label(f"{name}_fqj")
    a.emit(f"s_and_b32 {sr(S_T)}, {sr(S_KQ)}, 1")
    a.emit(f"s_cmp_eq_u32 {sr(S_T)}, 0")
    a.emit(f"s_cselect_b64 {sr(S_DM,2)}, {sr(S_MLO,2)}, {sr(S_MHI,2)}")
    a.emit(f"s_lshl_b32 {sr(S_T)}, {sr(S_T)}, 3")
    a.emit(f"v_add_u32 {vr(FA)}, {sr(S_T)}, {vr(V_L16)}")
    a.emit(f"s_add_u32 {sr(S_KV0)}, {sr(S_WS)}, {WS_KV}")
    a.emit(f"s_addc_u32 {sr(S_KV0+1)}, {sr(S_WS+1)}, 0")
    a.emit(f"v_cndmask_b32 {vr(FQ2)}, 0, {vr(FSH)}, {sr(S_DM,2)}")
    a.emit(f"v_cndmask_b32 {vr(FQ2+1)}, 0, {vr(FSH+1)}, {sr(S_DM,2)}")
    a.emit(f"v_mov_b32 {vr(FM)}, 0xff800000")
    for ps in range(2):
        a.emit(f"s_mov_b32 {sr(S_KV)}, {sr(S_KV0)}")
        a.emit(f"s_mov_b32 {sr(S_KV+1)}, {sr(S_KV0+1)}")
        a.emit(f"s_mov_b32 {sr(S_CNT)}, 64")
        if ps == 1:
            for i in range(16): a.emit(f"v_mov_b32 {vr(FO+i)}, 0")
        a.label(f"{name}_fl{ps}")
        a.emit(f"global_load_dwordx4 {vr(FK,4)}, {vr(V_L16)}, {sr(S_KV,2)}{LD}")
        a.emit(f"global_load_dwordx2 {vr(FK+4,2)}, {vr(FA)}, {sr(S_KV,2)} offset:1024{LD}")
        if ps == 1:
            a.emit(f"global_load_dwordx4 {vr(FK+6,4)}, {vr(V_L16)}, {sr(S_KV,2)} offset:2048{LD}")
            a.emit(f"global_load_dwordx4 {vr(FK+10,4)}, {vr(V_L16)}, {sr(S_KV,2)} offset:3072{LD}")
        kvadv(a)
        a.emit("s_waitcnt vmcnt(0)")
        mfma(a, FS, FK, FQ1, None)
        mfma8(a, FS, FK + 4, FQ2, FS)
        a.emit("s_nop 7"); a.emit("s_nop 7")
        if ps == 0:
            for i in range(8):
                a.emit(f"v_max3_f32 {vr(FM)}, {vr(FS+2*i)}, {vr(FS+2*i+1)}, {vr(FM)}")
        else:
            for i in range(16): a.emit(f"v_exp_f32 {vr(FS+i)}, {vr(FS+i)}")
            for i in range(8): a.emit(f"v_cvt_pk_bf16_f32 {vr(FP+i)}, {vr(FS+2*i)}, {vr(FS+2*i+1)}")
            mfma(a, FO, FK + 6, FP, FO)
            mfma(a, FO, FK + 10, FP + 4, FO)
            a.emit("s_nop 7"); a.emit("s_nop 7")
        a.emit(f"s_sub_u32 {sr(S_CNT)}, {sr(S_CNT)}, 1")
        a.emit(f"s_cmp_lg_u32 {sr(S_CNT)}, 0")
        a.emit(f"s_cbranch_scc1 {name}_fl{ps}")
        if ps == 0:
            t = FS; h = FS + 1; m_ = FS + 2; t0 = FS + 3; t1 = FS + 4
            a.emit(f"v_mov_b32 {vr(V_T2)}, {vr(FM)}")
            a.emit(f"v_mov_b32 {vr(V_T0)}, {vr(FM)}")
            a.emit(f"v_permlane32_swap_b32 {vr(V_T2)}, {vr(V_T0)}")
            a.emit(f"v_max_f32 {vr(FM)}, {vr(V_T2)}, {vr(V_T0)}")
            a.emit(f"v_sub_f32 {vr(t)}, 0, {vr(FM)}")
            a.emit(f"v_cvt_pk_bf16_f32 {vr(h)}, {vr(t)}, 0")
            a.emit(f"v_lshlrev_b32 {vr(h)}, 16, {vr(h)}")
            a.emit(f"v_sub_f32 {vr(t)}, {vr(t)}, {vr(h)}")
            a.emit(f"v_cvt_pk_bf16_f32 {vr(m_)}, {vr(t)}, 0")
            a.emit(f"v_lshlrev_b32 {vr(m_)}, 16, {vr(m_)}")
            a.emit(f"v_sub_f32 {vr(t)}, {vr(t)}, {vr(m_)}")
            a.emit(f"v_cvt_pk_bf16_f32 {vr(t1)}, {vr(t)}, 0")
            a.emit(f"v_cvt_pk_bf16_f32 {vr(t0)}, {vr(h)}, {vr(m_)}")
            a.emit(f"v_cndmask_b32 {vr(FQ2)}, {vr(t0)}, {vr(FSH)}, {sr(S_DM,2)}")
            a.emit(f"v_cndmask_b32 {vr(FQ2+1)}, {vr(t1)}, {vr(FSH+1)}, {sr(S_DM,2)}")
    for i in range(12): a.emit(f"v_mov_b32 {vr(R+i)}, {vr(FO+i)}")
    finalize(a, R, V_AD)
    a.emit(f"s_branch {name}_afterA")
    a.label(f"{name}_done")
```

```python
from asm import *
from layout import *
from common import *

ACC = 0; BF = 80; AF = 160
M_ = 200
V_LANE = M_; V_L16 = M_ + 1
V_T0 = M_ + 2; V_T1 = M_ + 3; V_T2 = M_ + 4; V_T3 = M_ + 5
V_AB = M_ + 6
V_OUT = M_ + 8
V_LO = M_ + 8
V_TR = M_ + 13
V_TW = M_ + 18
V_XW = M_ + 19; V_XR = M_ + 20
OPRE = 4
S_W = 10; S_T = 14; S_T2 = 15; S_PART = 11; S_RB = 12; S_CG = 13
S_WO = 16; S_O = 18; S_OUT = 20
S_RT = 22; S_KH = 23; S_M0 = 25
S_ROT = 26; S_KC = 27; S_K1 = 28; S_K2 = 29; S_SX = 30
STAGE = 20480; NBUF = 6
TA = 40960

def common_ids(a):
    a.emit(f"s_and_b32 {sr(S_T)}, s2, 7")
    a.emit(f"s_lshr_b32 {sr(S_T2)}, s2, 3")
    a.emit(f"s_lshr_b32 {sr(S_PART)}, {sr(S_T)}, 2")
    a.emit(f"s_and_b32 {sr(S_T)}, {sr(S_T)}, 3")
    a.emit(f"s_lshl_b32 {sr(S_T)}, {sr(S_T)}, 3")
    a.emit(f"s_lshr_b32 {sr(S_RB)}, {sr(S_T2)}, 2")
    a.emit(f"s_add_u32 {sr(S_RB)}, {sr(S_RB)}, {sr(S_T)}")
    a.emit(f"s_and_b32 {sr(S_CG)}, {sr(S_T2)}, 3")
    a.emit(f"s_lshr_b32 {sr(S_ROT)}, {sr(S_T2)}, 2")
    a.emit(f"s_mul_i32 {sr(S_T)}, {sr(S_CG)}, 3")
    a.emit(f"s_add_u32 {sr(S_ROT)}, {sr(S_ROT)}, {sr(S_T)}")
    a.emit(f"s_cmp_ge_u32 {sr(S_ROT)}, 10")
    a.emit(f"s_cselect_b32 {sr(S_T)}, 10, 0")
    a.emit(f"s_sub_u32 {sr(S_ROT)}, {sr(S_ROT)}, {sr(S_T)}")

def tr_base(a, dst, lane, t0, t1, rowbytes):
    a.emit(f"v_lshrrev_b32 {vr(t0)}, 5, {vr(lane)}")
    a.emit(f"v_lshlrev_b32 {vr(t0)}, 3, {vr(t0)}")
    a.emit(f"v_bfe_u32 {vr(t1)}, {vr(lane)}, 2, 2")
    a.emit(f"v_add_u32 {vr(t0)}, {vr(t0)}, {vr(t1)}")
    a.emit(f"v_mul_u32_u24 {vr(t0)}, {rowbytes}, {vr(t0)}")
    a.emit(f"v_bfe_u32 {vr(t1)}, {vr(lane)}, 4, 1")
    a.emit(f"v_lshl_add_u32 {vr(t0)}, {vr(t1)}, 5, {vr(t0)}")
    a.emit(f"v_and_b32 {vr(t1)}, 3, {vr(lane)}")
    a.emit(f"v_lshl_add_u32 {vr(dst)}, {vr(t1)}, 3, {vr(t0)}")

class P3:
    def __init__(self, a, prof):
        self.a = a; self.prof = prof; self.issued = []

    def pre(self):
        a = self.a; name = "P3"
        a.emit("s_load_dwordx2 s[6:7], s[0:1], 32")
        a.emit("s_load_dwordx2 s[8:9], s[0:1], 64")
        a.emit(f"s_load_dwordx2 {sr(S_OUT,2)}, s[0:1], 72")
        a.emit(f"v_mov_b32 {vr(V_LANE)}, {vr(V_LANE_G)}")
        a.emit(f"v_mov_b32 {vr(V_L16)}, {vr(V_L16_G)}")
        a.emit(f"s_mov_b32 {sr(S_W)}, {sr(S_WG)}")
        common_ids(a)
        a.emit(f"s_cmp_ge_u32 {sr(S_W)}, 4")
        a.emit(f"s_cbranch_scc1 {name}_lpre")
        a.emit(f"s_and_b32 {sr(S_RT)}, {sr(S_W)}, 1")
        a.emit(f"s_lshr_b32 {sr(S_KH)}, {sr(S_W)}, 1")
        a.emit(f"s_lshl_b32 {sr(S_T)}, {sr(S_RB)}, 1")
        a.emit(f"s_add_u32 {sr(S_T)}, {sr(S_T)}, {sr(S_RT)}")
        a.emit(f"s_mul_i32 {sr(S_T)}, {sr(S_T)}, 40")
        a.emit(f"s_mul_i32 {sr(S_T2)}, {sr(S_KH)}, 20")
        a.emit(f"s_add_u32 {sr(S_T)}, {sr(S_T)}, {sr(S_T2)}")
        a.emit(f"s_lshl_b32 {sr(S_T2)}, {sr(S_ROT)}, 1")
        a.emit(f"s_add_u32 {sr(S_T)}, {sr(S_T)}, {sr(S_T2)}")
        a.emit(f"s_lshl_b32 {sr(S_T)}, {sr(S_T)}, 10")
        a.emit(f"s_mul_i32 {sr(S_T2)}, {sr(S_PART)}, {WS_OB - WS_OA}")
        a.emit(f"s_add_u32 {sr(S_T)}, {sr(S_T)}, {sr(S_T2)}")
        a.emit(f"s_add_u32 {sr(S_T)}, {sr(S_T)}, {WS_OA}")
        a.emit(f"s_add_u32 {sr(S_O)}, {sr(S_WS)}, {sr(S_T)}")
        a.emit(f"s_addc_u32 {sr(S_O+1)}, {sr(S_WS+1)}, 0")
        a.emit(f"s_mov_b32 {sr(S_KC)}, {sr(S_ROT)}")
        a.emit(f"s_mov_b32 {sr(S_K1)}, 2048")
        tr_base(a, V_T2, V_LANE, V_T0, V_T3, 320)
        a.emit(f"s_mul_i32 {sr(S_T)}, {sr(S_KH)}, 10240")
        a.emit(f"v_add_u32 {vr(V_AB)}, {sr(S_T)}, {vr(V_T2)}")
        a.emit(f"v_add_u32 {vr(V_AB+1)}, {3*STAGE}, {vr(V_AB)}")
        a.emit(f"s_mul_i32 {sr(S_K2)}, {sr(S_W)}, 5632")
        a.emit(f"s_add_u32 {sr(S_K2)}, {sr(S_K2)}, {TA}")
        for i in range(5):
            a.emit(f"v_add_u32 {vr(V_T0)}, {64*i}, {vr(V_LANE)}")
            a.emit(f"v_mul_u32_u24 {vr(V_T1)}, 6554, {vr(V_T0)}")
            a.emit(f"v_lshrrev_b32 {vr(V_T1)}, 16, {vr(V_T1)}")
            a.emit(f"v_lshlrev_b32 {vr(V_T3)}, 4, {vr(V_T0)}")
            a.emit(f"v_lshl_add_u32 {vr(V_TR+i)}, {vr(V_T1)}, 4, {vr(V_T3)}")
            a.emit(f"v_add_u32 {vr(V_TR+i)}, {sr(S_K2)}, {vr(V_TR+i)}")
            a.emit(f"v_mul_u32_u24 {vr(V_T1)}, 2400, {vr(V_T1)}")
            a.emit(f"v_add_u32 {vr(V_OUT+i)}, {vr(V_T1)}, {vr(V_T3)}")
        a.emit(f"v_and_b32 {vr(V_T0)}, 31, {vr(V_LANE)}")
        a.emit(f"v_mul_u32_u24 {vr(V_T0)}, 176, {vr(V_T0)}")
        a.emit(f"v_lshrrev_b32 {vr(V_T1)}, 5, {vr(V_LANE)}")
        a.emit(f"v_lshl_add_u32 {vr(V_T0)}, {vr(V_T1)}, 3, {vr(V_T0)}")
        a.emit(f"v_add_u32 {vr(V_TW)}, {sr(S_K2)}, {vr(V_T0)}")
        a.emit(f"s_mul_i32 {sr(S_T)}, {sr(S_W)}, 10240")
        a.emit(f"v_add_u32 {vr(V_XW)}, {sr(S_T)}, {vr(V_L16)}")
        a.emit(f"s_xor_b32 {sr(S_T2)}, {sr(S_W)}, 2")
        a.emit(f"s_mul_i32 {sr(S_T2)}, {sr(S_T2)}, 10240")
        a.emit(f"v_add_u32 {vr(V_XR)}, {sr(S_T2)}, {vr(V_L16)}")
        a.emit(f"s_lshl_b32 {sr(S_T)}, {sr(S_RB)}, 6")
        a.emit(f"s_lshl_b32 {sr(S_T2)}, {sr(S_RT)}, 5")
        a.emit(f"s_add_u32 {sr(S_T)}, {sr(S_T)}, {sr(S_T2)}")
        a.emit(f"s_mul_i32 {sr(S_T)}, {sr(S_T)}, 2560")
        a.emit(f"s_mul_i32 {sr(S_T2)}, {sr(S_PART)}, 1280")
        a.emit(f"s_add_u32 {sr(S_T)}, {sr(S_T)}, {sr(S_T2)}")
        a.emit(f"s_mul_i32 {sr(S_T2)}, {sr(S_CG)}, 320")
        a.emit(f"s_add_u32 {sr(S_T)}, {sr(S_T)}, {sr(S_T2)}")
        a.emit(f"s_mul_i32 {sr(S_T2)}, {sr(S_KH)}, 160")
        a.emit(f"s_add_u32 {sr(S_T)}, {sr(S_T)}, {sr(S_T2)}")
        a.emit("s_waitcnt lgkmcnt(0)")
        a.emit(f"s_add_u32 {sr(S_OUT)}, {sr(S_OUT)}, {sr(S_T)}")
        a.emit(f"s_addc_u32 {sr(S_OUT+1)}, {sr(S_OUT+1)}, 0")
        a.emit(f"s_branch {name}_prej")
        a.label(f"{name}_lpre")
        a.emit(f"s_sub_u32 {sr(S_W)}, {sr(S_W)}, 4")
        a.emit(f"s_lshr_b32 {sr(S_KH)}, {sr(S_W)}, 1")
        a.emit(f"s_and_b32 {sr(S_RT)}, {sr(S_W)}, 1")
        for n in range(5):
            a.emit(f"v_add_u32 {vr(V_T0)}, {64*n}, {vr(V_LANE)}")
            div20(a, V_T1, V_T2, V_T0)
            a.emit(f"v_mul_u32_u24 {vr(V_T1)}, 1280, {vr(V_T1)}")
            a.emit(f"v_lshl_add_u32 {vr(V_LO+n)}, {vr(V_T2)}, 4, {vr(V_T1)}")
        a.emit(f"s_mul_i32 {sr(S_T)}, {sr(S_KH)}, {320*1280}")
        a.emit(f"s_mul_i32 {sr(S_T2)}, {sr(S_RT)}, {16*1280}")
        a.emit(f"s_add_u32 {sr(S_T)}, {sr(S_T)}, {sr(S_T2)}")
        a.emit(f"s_mul_i32 {sr(S_T2)}, {sr(S_CG)}, 320")
        a.emit(f"s_add_u32 {sr(S_T)}, {sr(S_T)}, {sr(S_T2)}")
        a.emit(f"s_mul_i32 {sr(S_T2)}, {sr(S_ROT)}, {32*1280}")
        a.emit(f"s_add_u32 {sr(S_T)}, {sr(S_T)}, {sr(S_T2)}")
        a.emit(f"s_mul_i32 {sr(S_M0)}, {sr(S_KH)}, 10240")
        a.emit(f"s_mul_i32 {sr(S_T2)}, {sr(S_RT)}, 5120")
        a.emit(f"s_add_u32 {sr(S_M0)}, {sr(S_M0)}, {sr(S_T2)}")
        a.emit("s_waitcnt lgkmcnt(0)")
        a.emit(f"s_cmp_eq_u32 {sr(S_PART)}, 0")
        a.emit(f"s_cselect_b32 {sr(S_WO)}, s6, s8")
        a.emit(f"s_cselect_b32 {sr(S_WO+1)}, s7, s9")
        a.emit(f"s_add_u32 {sr(S_WO)}, {sr(S_WO)}, {sr(S_T)}")
        a.emit(f"s_addc_u32 {sr(S_WO+1)}, {sr(S_WO+1)}, 0")
        a.emit(f"s_mov_b32 {sr(S_KC)}, {sr(S_ROT)}")
        a.emit(f"s_mov_b32 {sr(S_K1)}, {32*1280}")
        for c in range(6): self.chunk(c)
        a.label(f"{name}_prej")

    def chunk(self, c):
        a = self.a
        buf = c % NBUF
        if c > 0:
            a.emit(f"s_add_u32 {sr(S_KC)}, {sr(S_KC)}, 1")
            a.emit(f"s_cmp_eq_u32 {sr(S_KC)}, 10")
            a.emit(f"s_cselect_b32 {sr(S_KC)}, 0, {sr(S_KC)}")
            a.emit(f"s_cselect_b32 {sr(S_T)}, {-9*32*1280}, {sr(S_K1)}")
            a.emit(f"s_ashr_i32 {sr(S_SX)}, {sr(S_T)}, 31")
            a.emit(f"s_add_u32 {sr(S_WO)}, {sr(S_WO)}, {sr(S_T)}")
            a.emit(f"s_addc_u32 {sr(S_WO+1)}, {sr(S_WO+1)}, {sr(S_SX)}")
        for n in range(5):
            a.emit(f"s_add_u32 m0, {sr(S_M0)}, {buf*STAGE + n*1024}")
            a.emit(f"global_load_lds_dwordx4 {vr(V_LO+n)}, {sr(S_WO,2)}")
        self.issued.append(c)

    def main(self):
        a = self.a; name = "P3"; prof = self.prof
        a.emit(f"s_cmp_ge_u32 {sr(S_WG)}, 4")
        a.emit(f"s_cbranch_scc1 {name}_loader")
        def oload(k):
            if k and k % 2 == 0:
                a.emit(f"s_add_u32 {sr(S_KC)}, {sr(S_KC)}, 1")
                a.emit(f"s_cmp_eq_u32 {sr(S_KC)}, 10")
                a.emit(f"s_cselect_b32 {sr(S_KC)}, 0, {sr(S_KC)}")
                a.emit(f"s_cselect_b32 {sr(S_T)}, {-9*2048}, {sr(S_K1)}")
                a.emit(f"s_ashr_i32 {sr(S_SX)}, {sr(S_T)}, 31")
                a.emit(f"s_add_u32 {sr(S_O)}, {sr(S_O)}, {sr(S_T)}")
                a.emit(f"s_addc_u32 {sr(S_O+1)}, {sr(S_O+1)}, {sr(S_SX)}")
            a.emit(f"global_load_dwordx4 {vr(BF+4*k,4)}, {vr(V_L16)}, {sr(S_O,2)} offset:{(k%2)*1024} sc1")
        NPRE = 12
        for k in range(NPRE): oload(k)
        def rd(ks, t):
            c = ks >> 1; s = ks & 1; buf = c % NBUF
            base = V_AB + (buf // 3); off = (buf % 3) * STAGE + s * 5120 + t * 64
            st = AF + 20 * (ks & 1) + 4 * t
            a.emit(f"ds_read_b64_tr_b16 {vr(st,2)}, {vr(base)} offset:{off}")
            a.emit(f"ds_read_b64_tr_b16 {vr(st+2,2)}, {vr(base)} offset:{off+1280}")
        a.emit("s_barrier")
        nstamp(a, "P3B0", prof)
        if prof: a.emit("s_waitcnt lgkmcnt(0)")
        for t in range(5): rd(0, t)
        a.emit(f"s_waitcnt lgkmcnt(8) vmcnt({NPRE-1})")
        for ks in range(20):
            for t in range(5):
                mfma(a, ACC + 16 * t, AF + 20 * (ks & 1) + 4 * t, BF + 4 * ks, None if ks == 0 else ACC + 16 * t)
                if ks < 19:
                    w = "s_waitcnt lgkmcnt(6)"
                    if t == 4: w += f" vmcnt({min(NPRE-1, 18-ks)})"
                    a.emit(w)
                    if t == 2 and ks + NPRE < 20: oload(ks + NPRE)
                    if t == 0 and (ks & 1): a.emit("s_barrier")
                    rd(ks + 1, t)
                elif t < 4:
                    a.emit(f"s_waitcnt lgkmcnt({2*(3-t)})")
        nstamp(a, "P3main", prof)
        a.emit("s_barrier")
        a.emit(f"s_cmp_eq_u32 {sr(S_KH)}, 0")
        a.emit(f"s_cbranch_scc0 {name}_k1")
        for var in range(2):
            keep = 0 if var == 0 else 40
            send = 40 - keep
            a.emit("s_nop 7")
            for i in range(10):
                a.emit(f"ds_write_b128 {vr(V_XW)}, {vr(ACC+send+4*i,4)} offset:{i*1024}")
            a.emit("s_waitcnt lgkmcnt(0)")
            a.emit("s_barrier")
            for i in range(10):
                a.emit(f"ds_read_b128 {vr(BF+4*i,4)}, {vr(V_XR)} offset:{i*1024}")
            for i in range(10):
                a.emit(f"s_waitcnt lgkmcnt({9-i})")
                a.emit(f"v_pk_add_f32 {vr(BF+4*i,2)}, {vr(BF+4*i,2)}, {vr(ACC+keep+4*i,2)}")
                a.emit(f"v_pk_add_f32 {vr(BF+4*i+2,2)}, {vr(BF+4*i+2,2)}, {vr(ACC+keep+4*i+2,2)}")
                a.emit(f"v_cvt_pk_bf16_f32 {vr(AF+2*i)}, {vr(BF+4*i)}, {vr(BF+4*i+1)}")
                a.emit(f"v_cvt_pk_bf16_f32 {vr(AF+2*i+1)}, {vr(BF+4*i+2)}, {vr(BF+4*i+3)}")
            if var == 0:
                a.emit(f"s_branch {name}_fin")
                a.label(f"{name}_k1")
        a.label(f"{name}_fin")
        nstamp(a, "P3x", prof)
        for q in range(10):
            a.emit(f"ds_write_b64 {vr(V_TW)}, {vr(AF+2*q,2)} offset:{q*16}")
        a.emit("s_waitcnt lgkmcnt(0)")
        for i in range(5):
            a.emit(f"ds_read_b128 {vr(BF+4*i,4)}, {vr(V_TR+i)}")
        for i in range(5):
            a.emit(f"s_waitcnt lgkmcnt({4-i})")
            a.emit(f"global_store_dwordx4 {vr(V_OUT+i)}, {vr(BF+4*i,4)}, {sr(S_OUT,2)}")
        nstamp(a, "P3st", prof)
        a.emit(f"s_branch {name}_end")
        a.label(f"{name}_loader")
        for c in range(10):
            after = len([x for x in self.issued if x > c])
            a.emit(f"s_waitcnt vmcnt({5*after})")
            a.emit("s_barrier")
            if c >= 2 and c + 4 < 10: self.chunk(c + 4)
        a.emit("s_barrier")
        a.emit("s_barrier")
        a.label(f"{name}_end")
```

```python
from asm import *
from layout import *
from common import *
import fp1, fp2, fp3

def gen_fused(name="fused_kernel", prof=False, yield_at=10, mixed=0, cpf=1, nokmax=0, nokv=0):
    fp1.DBG.update(nokmax=nokmax, nokv=nokv)
    a = Asm()
    a(f".p2align 8\n.globl {name}\n.type {name},@function")
    a.label(name)
    a.emit("s_cmp_ge_u32 s2, 256")
    a.emit(f"s_cbranch_scc1 {name}_end")
    nstamp(a, "start", prof)
    a.emit(f"s_load_dwordx2 {sr(S_WS,2)}, s[0:1], 88")
    a.emit(f"s_load_dwordx2 {sr(S_DBG,2)}, s[0:1], 80")
    a.emit(f"v_lshrrev_b32 v1, 6, v0")
    a.emit(f"v_and_b32 {vr(V_LANE_G)}, 63, v0")
    a.emit(f"v_readfirstlane_b32 {sr(S_WG)}, v1")
    a.emit(f"v_lshlrev_b32 {vr(V_L16_G)}, 4, {vr(V_LANE_G)}")
    a.emit("s_waitcnt lgkmcnt(0)")
    if cpf: code_prefetch(a, name, 10, 11)
    init_counters(a, 4, 8)
    fp1.phase1(a, prof, mixed)
    gbar_arrive(a, 0, 224, 225, prof)
    nstamp(a, "arr0", prof)
    fp2.phase2(a, prof, yield_at)
    gbar_wait(a, 0, 224, 225)
    nstamp(a, "wait0", prof)
    fp2.phase2_after_barrier(a, prof, yield_at)
    a.emit("s_setprio 0")
    gbar_arrive(a, 1, 224, 225)
    nstamp(a, "arr1", prof)
    p3 = fp3.P3(a, prof)
    p3.pre()
    gbar_wait(a, 1, 224, 225)
    nstamp(a, "wait1", prof)
    p3.main()
    nstamp(a, "end", prof)
    stamp_store(a, prof, S_WS, S_WG, 2, 3, 8, WS_PROF)
    a.label(f"{name}_end")
    a.emit("s_endpgm")
    desc = f"""
.amdhsa_kernel {name}
  .amdhsa_next_free_vgpr {NV}
  .amdhsa_next_free_sgpr 102
  .amdhsa_accum_offset {NV}
  .amdhsa_group_segment_fixed_size 0
  .amdhsa_kernarg_size 96
  .amdhsa_user_sgpr_count 2
  .amdhsa_user_sgpr_kernarg_segment_ptr 1
  .amdhsa_system_sgpr_workgroup_id_x 1
.end_amdhsa_kernel
"""
    launch = f"; @launch kernel={name} grid=(256,1,1) block=(512,1,1) lds={fp1.LDS_P1}"
    return a.text(), desc, launch
```
